```python
import torch

def _softmax(x, axis=-1):
    return torch.softmax(x, dim=axis)
def _gelu(x):
    return torch.nn.functional.gelu(x, approximate="tanh")
def _silu(x):
    return torch.nn.functional.silu(x)
def _sigmoid(x):
    return torch.sigmoid(x)
def _layernorm(x, axis=-1, eps=1e-5):
    m = x.mean(dim=axis, keepdim=True)
    v = x.var(dim=axis, keepdim=True, unbiased=False)
    return (x - m) / torch.sqrt(v + eps)
def _scatter_add(tgt, idx, src, axis=0):
    return tgt.clone().index_add_(axis, idx, src)
def _segment_sum(src, seg, n):
    out = torch.zeros((n,) + src.shape[1:], dtype=src.dtype)
    return out.index_add_(0, seg, src)
def _pad(x, pw):
    flat = tuple(v for pair in reversed(pw) for v in pair)
    return torch.nn.functional.pad(x, flat)

kernel_name = 'recurrent_scan__softmax_full_mha__dense_activation_relu__prompt'

def setup_inputs():

    _w = (lambda a: (lambda t: t.to(torch.bfloat16) if t.is_floating_point() else t)(torch.as_tensor(a)))
    def _A_setup():
        B, S, D = 1, 2048, 512
        return {
            "x": _w((lambda *s: torch.randn(*s, dtype=torch.bfloat16) * 0.05)(B, S, D)),
            "wqkv": _w((lambda *s: torch.randn(*s, dtype=torch.bfloat16) * 0.05)(D, 3 * D)),
            "wo": _w((lambda *s: torch.randn(*s, dtype=torch.bfloat16) * 0.05)(D, D)),
        }
    _A_in = _A_setup()

    def _B_setup():
        B, S, D, Dff = 1, 2048, 512, 1376
        return {
            "x": _w((lambda *s: torch.randn(*s, dtype=torch.bfloat16) * 0.05)(B, S, D)),
            "w1": _w((lambda *s: torch.randn(*s, dtype=torch.bfloat16) * 0.05)(D, Dff)),
            "w2": _w((lambda *s: torch.randn(*s, dtype=torch.bfloat16) * 0.05)(Dff, D)),
        }
    _B_in = _B_setup()

    return {
        "A_x": _A_in["x"],
        "A_wqkv": _A_in["wqkv"],
        "A_wo": _A_in["wo"],
        "B_x": _B_in["x"],
        "B_w1": _B_in["w1"],
        "B_w2": _B_in["w2"],
    }

def reference(A_x, A_wqkv, A_wo, B_x, B_w1, B_w2):
    def _A_ref(x, wqkv, wo):
        B, S, D = x.shape
        H = 32; Dh = D // H
        qkv = (lambda x, *d: x.permute(*d))((x @ wqkv).reshape(B, S, 3, H, Dh), 2, 0, 3, 1, 4)
        q, k, v = qkv[0], qkv[1], qkv[2]
        scale = Dh ** -0.5
        scores = torch.einsum("bhqd,bhkd->bhqk", q, k) * scale
        p = _softmax(scores, axis=-1)
        o = torch.einsum("bhqk,bhkd->bhqd", p, v)
        return (lambda x, *d: x.permute(*d))(o, 0, 2, 1, 3).reshape(B, S, D) @ wo

    def _B_ref(x, w1, w2):
        h = torch.einsum("bsd,df->bsf", x, w1)
        zero = torch.zeros_like(h)
        h = torch.maximum(h, zero)
        return torch.einsum("bsf,fd->bsd", h, w2)

    x = A_x
    xn = _layernorm(x, axis=-1)
    s = _A_ref(xn, A_wqkv, A_wo)
    g = _silu(_B_ref(xn, B_w1, B_w2))
    return x + s * g
```

```python
import sys, struct, math

NAME = "recurrent_scan__softmax_full_mha__dense_activation_relu__prompt"

def f2u(x):
    return struct.unpack("<I", struct.pack("<f", x))[0]

class Cfg:
    stamps = False
    kname = NAME + "_kernel"
    a_steps = 44
    force_slow = False
    spin = 200000

WS_EPOCH = 0x0
WS_KVF = 0x1000
WS_HF = 0x4000
WS_OF = 0x8000
WS_KV = 0x100000
WS_H = 0x500000
H_BLK = 86 * 2048
WS_O = 0xB00000
WS_SIZE = 0xD00000

L_RING = 65536
L_QX = 0
L_KX = 8192
L_PARK = 12288
L_SCR = 16384
L_REG = 32768

class E:
    def __init__(self):
        self.L = []
        self.nlab = 0
    def __call__(self, s):
        for line in s.strip("\n").split("\n"):
            line = line.rstrip()
            if not line.strip():
                continue
            if line.strip().endswith(":") and " " not in line.strip():
                self.L.append(line.strip())
            else:
                self.L.append("    " + line.strip())
    def lab(self, p="L"):
        self.nlab += 1
        return f"{p}_{self.nlab}"
    def text(self):
        return "\n".join(self.L) + "\n"

def vr(a, n):
    return f"v[{a}:{a+n-1}]"

def gen(cfg):
    e = E()
    nstamp = [0]
    def stamp(idx):
        if cfg.stamps:
            e(f"s_memtime s[{84+0}:{84+1}]")
            e("s_waitcnt lgkmcnt(0)")
            e(f"s_sub_u32 s84, s84, s82")
            e(f"v_writelane_b32 v15, s84, {idx}")
    X, W, WS, H, OUT = 4, 8, 12, 16, 20
    sWV, sI, sG, sROT, sTAG, sRND = 24, 25, 26, 27, 28, 29
    sRD, sWR, sSTRIDE, sSTART, sINC, sSTR8 = 30, 31, 32, 33, 34, 35
    P2, P3 = 36, 41
    sONES, sSCALE, sRELU, sTYPE = 46, 47, 48, 49
    sVMASK = 50
    sT0, sT1, sT2, sT3 = 52, 53, 54, 55
    sKVST, sHST, sROLE, sCNT, sKVO, sMODE = 56, 57, 58, 59, 60, 61
    sSPIN, sT4 = 62, 63
    pX, pWQKV, pWO, pBX, pW1, pW2, pOUT, pDBG, pWS = 64, 66, 68, 70, 72, 74, 76, 78, 80
    srd = lambda b: f"s[{b}:{b+3}]"
    vLANE, vL16, vXO, vWO, vWROW, vWP, vWT, vWA = 1, 2, 3, 4, 5, 6, 7, 8
    vXA = 9
    vT0, vT1 = 13, 14
    ACC = 16
    WF = 32
    vS1a, vS1b, vS2a, vS2b, vCSa, vCSb = 64, 65, 66, 67, 68, 69
    vMU, vRS = 70, 72
    CS = 76
    PK = 92
    VT = 100
    vSC = 108
    XF = 128

    e(f"""
s_cmp_ge_u32 s2, 256
s_cbranch_scc1 L_exit
s_load_dwordx16 s[64:79], s[0:1], 0
s_load_dwordx2 s[80:81], s[0:1], 64
""")
    if cfg.stamps:
        e("s_memtime s[82:83]\ns_memrealtime s[86:87]\nv_mov_b32 v15, 0")
    e(f"""
v_and_b32 v{vLANE}, 63, v0
v_lshrrev_b32 v{vT0}, 6, v0
v_lshlrev_b32 v{vL16}, 4, v{vLANE}
v_readfirstlane_b32 s{sWV}, v{vT0}
s_and_b32 s{sT0}, s2, 7
s_lshr_b32 s{sT1}, s2, 3
s_and_b32 s{sT2}, s{sT0}, 3
s_lshl_b32 s{sT2}, s{sT2}, 3
s_and_b32 s{sT3}, s{sT1}, 7
s_add_u32 s{sI}, s{sT2}, s{sT3}
s_lshr_b32 s{sT2}, s{sT0}, 2
s_lshl_b32 s{sT2}, s{sT2}, 2
s_lshr_b32 s{sT3}, s{sT1}, 3
s_add_u32 s{sG}, s{sT2}, s{sT3}
s_lshl_b32 s{sT2}, s{sG}, 1
s_add_u32 s{sROT}, s{sI}, s{sT2}
s_and_b32 s{sROT}, s{sROT}, 7
s_lshr_b32 s{sROLE}, s{sWV}, 2
s_mov_b32 s{sONES}, 0x3f803f80
v_lshrrev_b32 v{vWROW}, 3, v{vLANE}
s_lshl_b32 s{sT0}, s{sWV}, 3
v_add_u32 v{vT0}, s{sT0}, v{vWROW}
v_bfe_u32 v{vT1}, v{vT0}, 1, 3
v_and_b32 v{vXO}, 7, v{vLANE}
v_xor_b32 v{vXO}, v{vXO}, v{vT1}
v_lshlrev_b32 v{vXO}, 4, v{vXO}
v_lshl_add_u32 v{vXO}, v{vT0}, 10, v{vXO}
s_lshl_b32 s{sT0}, s{sI}, 16
v_add_u32 v{vXO}, s{sT0}, v{vXO}
v_bfe_u32 v{vT1}, v{vLANE}, 4, 1
v_lshlrev_b32 v{vT1}, 2, v{vT1}
v_and_b32 v{vWP}, 7, v{vLANE}
v_xor_b32 v{vWP}, v{vWP}, v{vT1}
v_lshlrev_b32 v{vWP}, 4, v{vWP}
s_movk_i32 s{sSTRIDE}, 3072
v_mad_u32_u24 v{vWO}, v{vWROW}, s{sSTRIDE}, v{vWP}
s_mov_b32 s{sINC}, {64*3072}
s_movk_i32 s{sSTR8}, {8*3072}
s_and_b32 s{sT3}, s{sWV}, 3
s_lshl_b32 s{sT3}, s{sT3}, 4
s_mul_i32 s{sT0}, s{sT3}, 3072
s_mul_i32 s{sT1}, s{sT3}, 2752
s_lshl_b32 s{sT2}, s{sG}, 7               ; g*128 bytes
s_add_u32 s{sT0}, s{sT0}, s{sT2}
s_mul_i32 s{sT2}, s{sT2}, 3
s_add_u32 s{sT1}, s{sT1}, s{sT2}          ; w1: rows + 384g
s_lshl_b32 s{sT2}, s{sROLE}, 10
s_add_u32 s{sSTART}, s{sT0}, s{sT2}
s_add_u32 s{sSTART}, s{sSTART}, 1024
s_lshl_b32 s{sT2}, s{sROLE}, 7
s_add_u32 s{P3+4}, s{sT1}, s{sT2}
s_add_u32 s{P3+4}, s{P3+4}, 128
s_lshl_b32 s{sWR}, s{sWV}, 11
s_add_u32 s{sWR}, s{sWR}, {L_RING}
s_lshl_b32 s{sT4}, s{sWV}, 10
s_waitcnt lgkmcnt(0)
s_load_dword s{sTAG}, s[{pWS}:{pWS+1}], {WS_EPOCH}
s_mov_b32 s{X}, s{pX}
s_mov_b32 s{X+1}, s{pX+1}
s_mov_b32 s{X+2}, 0x200000
s_mov_b32 s{X+3}, 0x00020000
s_mov_b32 s{W}, s{pWQKV}
s_mov_b32 s{W+1}, s{pWQKV+1}
s_mov_b32 s{W+2}, 0x180000
s_mov_b32 s{W+3}, 0x00020000
""")
    def x_dma(n):
        e(f"""
s_add_u32 s{sT2}, s{sROT}, {n}
s_and_b32 s{sT2}, s{sT2}, 7
s_lshl_b32 s{sT2}, s{sT2}, 7
s_add_u32 m0, s{sT4}, {n*8192}
s_nop 0
buffer_load_dwordx4 v{vXO}, {srd(X)}, s{sT2} offen lds
""")
    def w_dma(kc):
        e(f"""
s_add_u32 s{sT2}, s{sROT}, {kc}
s_and_b32 s{sT2}, s{sT2}, 7
s_mul_i32 s{sT2}, s{sT2}, s{sINC}
s_mov_b32 m0, s{sWR}
s_add_u32 s{sT2}, s{sT2}, s{sSTART}
buffer_load_dwordx4 v{vWO}, {srd(W)}, s{sT2} offen lds
s_add_u32 m0, s{sWR}, 1024
s_add_u32 s{sT2}, s{sT2}, s{sSTR8}
buffer_load_dwordx4 v{vWO}, {srd(W)}, s{sT2} offen lds
s_add_u32 s{sWR}, s{sWR}, 16384
s_cmp_ge_u32 s{sWR}, {L_RING + 6*16384}
s_cselect_b32 s{sT2}, {6*16384}, 0
s_sub_u32 s{sWR}, s{sWR}, s{sT2}
""")
    for n in range(5):
        x_dma(n)
        w_dma(n)
    for n in range(5, 8):
        x_dma(n)
    e(f"""
s_cmp_eq_u32 s{sROLE}, 0
s_cselect_b32 s{P2}, s{pWQKV}, s{pW1}
s_cselect_b32 s{P2+1}, s{pWQKV+1}, s{pW1+1}
s_mov_b32 s{P3+2}, 0x158000
s_cselect_b32 s{P2+2}, 0x180000, s{P3+2}
s_movk_i32 s{P3+3}, 2752
s_cselect_b32 s{P2+3}, 3072, s{P3+3}
s_cselect_b32 s{P2+4}, s{sT0}, s{sT1}
s_mov_b32 s{P3}, s{pW1}
s_mov_b32 s{P3+1}, s{pW1+1}
s_mov_b32 s{WS}, s{pWS}
s_mov_b32 s{WS+1}, s{pWS+1}
s_mov_b32 s{WS+2}, {0x10000000 if cfg.stamps else WS_SIZE}
s_mov_b32 s{WS+3}, 0x00020000
s_mul_i32 s{sT2}, s{sI}, {H_BLK}
s_add_u32 s{sT2}, s{sT2}, {WS_H}
s_add_u32 s{H}, s{pWS}, s{sT2}
s_addc_u32 s{H+1}, s{pWS+1}, 0
s_mov_b32 s{H+2}, {H_BLK}
s_mov_b32 s{H+3}, 0x00020000
s_mov_b32 s{OUT}, s{pOUT}
s_mov_b32 s{OUT+1}, s{pOUT+1}
s_mov_b32 s{OUT+2}, 0x200000
s_mov_b32 s{OUT+3}, 0x00020000
s_mov_b32 s{sVMASK}, 0xffff
s_mov_b32 s{sVMASK+1}, 0xffff
s_and_b32 s{sT0}, s{sWV}, 1
s_bfe_u32 s{sT1}, s{sWV}, 0x10001
s_lshl_b32 s{sT2}, s{sG}, 1
s_add_u32 s{sT2}, s{sT2}, s{sT1}
s_lshl_b32 s{sKVST}, s{sT2}, 18
s_lshl_b32 s{sT2}, s{sI}, 1
s_add_u32 s{sT2}, s{sT2}, s{sT0}
s_lshl_b32 s{sT2}, s{sT2}, 11
s_add_u32 s{sKVST}, s{sKVST}, s{sT2}
s_add_u32 s{sKVST}, s{sKVST}, {WS_KV}
s_mul_i32 s{sT2}, s{sG}, 6
s_add_u32 s{sT2}, s{sT2}, s{sT1}
s_lshl_b32 s{sHST}, s{sT2}, 12
s_lshl_b32 s{sT2}, s{sT0}, 10
s_add_u32 s{sHST}, s{sHST}, s{sT2}
v_and_b32 v{vT0}, 31, v{vLANE}
v_bfe_u32 v{vT1}, v{vLANE}, 1, 3
v_lshrrev_b32 v{vXA}, 5, v{vLANE}
v_xor_b32 v{vXA}, v{vXA}, v{vT1}
v_lshlrev_b32 v{vXA}, 4, v{vXA}
v_lshl_add_u32 v{vXA}, v{vT0}, 7, v{vXA}
s_lshl_b32 s{sT2}, s{sT0}, 12
v_add_u32 v{vXA}, s{sT2}, v{vXA}
v_xor_b32 v{vXA+1}, 32, v{vXA}
v_xor_b32 v{vXA+2}, 64, v{vXA}
v_xor_b32 v{vXA+3}, 0x60, v{vXA}
v_bfe_u32 v{vT0}, v{vLANE}, 2, 2
v_lshrrev_b32 v{vT1}, 5, v{vLANE}
v_lshl_add_u32 v{vWT}, v{vT1}, 3, v{vT0}
v_lshlrev_b32 v{vWT}, 7, v{vWT}
v_bfe_u32 v{vT0}, v{vLANE}, 3, 1
v_xor_b32 v{vT0}, s{sT1}, v{vT0}
v_lshl_add_u32 v{vWT}, v{vT0}, 6, v{vWT}
v_bfe_u32 v{vT0}, v{vLANE}, 4, 1
v_lshl_add_u32 v{vWT}, v{vT0}, 5, v{vWT}
v_and_b32 v{vT0}, 3, v{vLANE}
v_lshl_add_u32 v{vWT}, v{vT0}, 3, v{vWT}
s_lshl_b32 s{sT2}, s{sROLE}, 13
v_add_u32 v{vWT}, s{sT2}, v{vWT}
v_mov_b32 v{vS1a}, 0
v_mov_b32 v{vS1b}, 0
v_mov_b32 v{vS2a}, 0
v_mov_b32 v{vS2b}, 0
v_mov_b32 v{vCSa}, 0
v_mov_b32 v{vCSb}, 0
s_mov_b32 s{sRD}, {L_RING}
s_mov_b32 s{sRND}, 0
s_mov_b64 vcc, 0
s_waitcnt lgkmcnt(0)
s_mul_i32 s{sTAG}, s{sTAG}, 0x9E3779B1
s_add_u32 s{sTAG}, s{sTAG}, 0x7F4A7C15
""")
    def w_reads(st):
        e(f"v_add_u32 v{vWA}, s{sRD}, v{vWT}")
        for s in range(4):
            b = WF + st * 16 + s * 4
            e(f"ds_read_b64_tr_b16 {vr(b,2)}, v{vWA} offset:{s*2048}")
            e(f"ds_read_b64_tr_b16 {vr(b+2,2)}, v{vWA} offset:{s*2048+512}")
        e(f"""
s_add_u32 s{sRD}, s{sRD}, 16384
s_cmp_ge_u32 s{sRD}, {L_RING + 6*16384}
s_cselect_b32 s{sT2}, {6*16384}, 0
s_sub_u32 s{sRD}, s{sRD}, s{sT2}
""")
    def x_reads(kc):
        for s in range(4):
            e(f"ds_read_b128 {vr(XF + kc*16 + s*4, 4)}, v{vXA+s} offset:{kc*8192}")
    def mfmas(kc):
        st = kc & 1
        for s in range(4):
            b = WF + st * 16 + s * 4
            c = "0" if (kc == 0 and s == 0) else vr(ACC, 16)
            e(f"v_mfma_f32_32x32x16_bf16 {vr(ACC,16)}, {vr(b,4)}, {vr(XF+kc*16+s*4,4)}, {c}")
            for q in range(4):
                e(f"v_dot2c_f32_bf16 v{vCSa + (q&1)}, s{sONES}, v{b+q}")
    def stats(kc):
        for j in range(16):
            x = XF + kc * 16 + j
            e(f"v_dot2c_f32_bf16 v{vS1a + (j&1)}, s{sONES}, v{x}")
            e(f"v_dot2c_f32_bf16 v{vS2a + (j&1)}, v{x}, v{x}")

    stamp(0)
    e("s_waitcnt vmcnt(8)\ns_barrier")
    stamp(1)
    w_dma(5)
    w_reads(0)
    x_reads(0)
    e("s_waitcnt lgkmcnt(0)")
    e("L_round:")
    for kc in range(1, 9):
        e("s_waitcnt vmcnt(8)")
        if kc >= 4 and kc <= 7:
            l1 = e.lab()
            e(f"s_cbranch_vccz {l1}\ns_waitcnt vmcnt({8-2*(kc-3)})\n{l1}:")
        e("s_barrier")
        if kc == 5:
            l1 = e.lab()
            e(f"""
s_cmp_lg_u32 s{sRND}, 1
s_cbranch_scc1 {l1}
s_lshl_b32 s{sT0}, s{sG}, 10
s_lshl_b32 s{sT1}, s{sI}, 5
s_add_u32 s{sT0}, s{sT0}, s{sT1}
s_lshl_b32 s{sT1}, s{sWV}, 2
s_add_u32 s{sT0}, s{sT0}, s{sT1}
v_mov_b32 v{vT0}, s{sTAG}
v_mov_b32 v{vT1}, {WS_KVF}
s_mov_b64 exec, 1
buffer_store_dword v{vT0}, v{vT1}, {srd(WS)}, s{sT0} offen sc1
s_mov_b64 exec, -1
{l1}:
""")
        if kc == 3:
            e(f"""
s_cmp_eq_u32 s{sRND}, 2
s_cselect_b64 vcc, -1, 0
s_mov_b32 s{W}, s{P2}
s_mov_b32 s{W+1}, s{P2+1}
s_mov_b32 s{W+2}, s{P2+2}
s_mov_b32 s{sSTRIDE}, s{P2+3}
s_mov_b32 s{sSTART}, s{P2+4}
s_lshl_b32 s{sINC}, s{sSTRIDE}, 6
s_lshl_b32 s{sSTR8}, s{sSTRIDE}, 3
v_mad_u32_u24 v{vWO}, v{vWROW}, s{sSTRIDE}, v{vWP}
s_mov_b32 s{P2}, s{P3}
s_mov_b32 s{P2+1}, s{P3+1}
s_mov_b32 s{P2+2}, s{P3+2}
s_mov_b32 s{P2+3}, s{P3+3}
s_mov_b32 s{P2+4}, s{P3+4}
""")
        if kc >= 3:
            l2 = e.lab()
            e(f"s_cbranch_vccnz {l2}")
            w_dma((kc + 5) & 7)
            e(f"{l2}:")
        else:
            w_dma(kc + 5)
        w_reads(kc & 1)
        l3 = e.lab()
        e(f"s_cmp_lg_u32 s{sRND}, 0\ns_cbranch_scc1 {l3}")
        if kc < 8:
            x_reads(kc)
        stats(kc - 1)
        e(f"{l3}:")
        mfmas(kc - 1)
        e("s_waitcnt lgkmcnt(0)")
    l4 = e.lab()
    e(f"""
s_cmp_lg_u32 s{sRND}, 0
s_cbranch_scc1 {l4}
v_add_f32 v{vS1a}, v{vS1a}, v{vS1b}
v_add_f32 v{vS2a}, v{vS2a}, v{vS2b}
v_mov_b32 v{vS1b}, v{vS1a}
v_mov_b32 v{vS2b}, v{vS2a}
s_nop 1
v_permlane32_swap_b32 v{vS1a}, v{vS1b}
v_permlane32_swap_b32 v{vS2a}, v{vS2b}
s_nop 1
v_add_f32 v{vS1a}, v{vS1a}, v{vS1b}
v_add_f32 v{vS2a}, v{vS2a}, v{vS2b}
v_mul_f32 v{vMU}, {hex(f2u(-1.0/512))}, v{vS1a}          ; -mean
v_mul_f32 v{vS2a}, {hex(f2u(1.0/512))}, v{vS2a}
v_fma_f32 v{vS2a}, -v{vMU}, v{vMU}, v{vS2a}
v_max_f32 v{vS2a}, 0, v{vS2a}
v_add_f32 v{vS2a}, {hex(f2u(1e-5))}, v{vS2a}
v_rsq_f32 v{vRS}, v{vS2a}
{l4}:
s_lshl_b32 s{sTYPE}, s{sRND}, 1
s_add_u32 s{sTYPE}, s{sTYPE}, s{sROLE}
s_min_u32 s{sTYPE}, s{sTYPE}, 3
s_cmp_eq_u32 s{sTYPE}, 2
s_cselect_b32 s{sSCALE}, {hex(f2u(0.25*math.log2(math.e)))}, 1.0
s_cmp_eq_u32 s{sTYPE}, 3
s_cselect_b32 s{sRELU}, 0, 0x80008000
v_add_f32 v{vCSa}, v{vCSa}, v{vCSb}
s_lshl_b32 s{sT0}, s{sWV}, 11
s_add_u32 s{sT0}, s{sT0}, {L_SCR}
v_mov_b32 v{vCSb}, v{vCSa}
v_lshl_add_u32 v{vT0}, v{vLANE}, 2, s{sT0}
v_lshrrev_b32 v{vT1}, 5, v{vLANE}
v_permlane32_swap_b32 v{vCSa}, v{vCSb}
v_lshl_add_u32 v{vT1}, v{vT1}, 4, s{sT0}
v_mul_f32 v{vSC}, s{sSCALE}, v{vRS}
v_add_f32 v{vCSa}, v{vCSa}, v{vCSb}
ds_write_b32 v{vT0}, v{vCSa}
v_mov_b32 v{vCSb}, 0
s_waitcnt lgkmcnt(0)
ds_read_b128 {vr(CS,4)}, v{vT1}
ds_read_b128 {vr(CS+4,4)}, v{vT1} offset:32
ds_read_b128 {vr(CS+8,4)}, v{vT1} offset:64
ds_read_b128 {vr(CS+12,4)}, v{vT1} offset:96
v_mov_b32 v{vCSa}, 0
s_waitcnt lgkmcnt(0)
""")
    for j in range(8):
        e(f"v_pk_fma_f32 {vr(CS+2*j,2)}, {vr(CS+2*j,2)}, {vr(vMU,2)}, {vr(ACC+2*j,2)} op_sel_hi:[1,0,1]")
    for j in range(8):
        e(f"v_pk_mul_f32 {vr(CS+2*j,2)}, {vr(CS+2*j,2)}, {vr(vSC,2)} op_sel_hi:[1,0]")
    for j in range(8):
        e(f"v_cvt_pk_bf16_f32 v{PK+j}, v{CS+2*j}, v{CS+2*j+1}")
    for j in range(8):
        e(f"v_pk_max_i16 v{PK+j}, v{PK+j}, s{sRELU}")
    lK, lV, lQ, lD = e.lab("LK"), e.lab("LV"), e.lab("LQ"), e.lab("LD")
    e(f"""
s_cmp_eq_u32 s{sTYPE}, 0
s_cbranch_scc1 {lK}
s_cmp_eq_u32 s{sTYPE}, 1
s_cbranch_scc1 {lV}
s_cmp_eq_u32 s{sTYPE}, 2
s_cbranch_scc1 {lQ}
s_sub_u32 s{sT0}, s{sRND}, 1
s_add_u32 s{sT1}, s{sROLE}, 1
s_mul_i32 s{sT0}, s{sT0}, s{sT1}
s_lshl_b32 s{sT0}, s{sT0}, 13
s_add_u32 s{sT0}, s{sT0}, s{sHST}
buffer_store_dwordx4 {vr(PK,4)}, v{vL16}, {srd(H)}, s{sT0} offen sc1
buffer_store_dwordx4 {vr(PK+4,4)}, v{vL16}, {srd(H)}, s{sT0} offen offset:2048 sc1
s_branch {lD}
{lK}:
s_add_u32 s{sT0}, s{sKVST}, 0x20000
buffer_store_dwordx4 {vr(PK,4)}, v{vL16}, {srd(WS)}, s{sKVST} offen sc1
buffer_store_dwordx4 {vr(PK+4,4)}, v{vL16}, {srd(WS)}, s{sT0} offen sc1
s_bitcmp1_b32 s{sWV}, 0
s_cbranch_scc1 {lD}
s_lshl_b32 s{sT0}, s{sWV}, 10
v_add_u32 v{vT0}, s{sT0}, v{vL16}
ds_write_b128 v{vT0}, {vr(PK,4)} offset:{L_KX}
ds_write_b128 v{vT0}, {vr(PK+4,4)} offset:{L_KX+1024}
s_branch {lD}
{lV}:
v_and_b32 v{vT0}, 31, v{vLANE}
v_lshl_add_u32 v{vT0}, v{vT0}, 6, s{sT0}
v_lshrrev_b32 v{vT1}, 5, v{vLANE}
v_lshl_add_u32 v{vT0}, v{vT1}, 3, v{vT0}
ds_write_b64 v{vT0}, {vr(PK,2)}
ds_write_b64 v{vT0}, {vr(PK+2,2)} offset:16
ds_write_b64 v{vT0}, {vr(PK+4,2)} offset:32
ds_write_b64 v{vT0}, {vr(PK+6,2)} offset:48
v_bfe_u32 v{vT0}, v{vLANE}, 2, 2
v_lshl_add_u32 v{vT0}, v{vT1}, 2, v{vT0}
v_lshl_add_u32 v{vT0}, v{vT0}, 6, s{sT0}
v_bfe_u32 v{CS}, v{vLANE}, 4, 1
v_lshl_add_u32 v{vT0}, v{CS}, 5, v{vT0}
v_and_b32 v{CS+1}, 3, v{vLANE}
v_lshl_add_u32 v{vT0}, v{CS+1}, 3, v{vT0}
s_waitcnt lgkmcnt(0)
ds_read_b64_tr_b16 {vr(VT,2)}, v{vT0}
ds_read_b64_tr_b16 {vr(VT+2,2)}, v{vT0} offset:512
ds_read_b64_tr_b16 {vr(VT+4,2)}, v{vT0} offset:1024
ds_read_b64_tr_b16 {vr(VT+6,2)}, v{vT0} offset:1536
v_lshlrev_b32 v{CS}, 17, v{CS}
v_lshl_add_u32 v{CS}, v{vT1}, 8, v{CS}
v_and_b32 v{CS+1}, 15, v{vLANE}
v_lshl_add_u32 v{CS}, v{CS+1}, 4, v{CS}
s_waitcnt lgkmcnt(0)
buffer_store_dwordx4 {vr(VT,4)}, v{CS}, {srd(WS)}, s{sKVST} offen offset:1024 sc1
buffer_store_dwordx4 {vr(VT+4,4)}, v{CS}, {srd(WS)}, s{sKVST} offen offset:1536 sc1
s_branch {lD}
{lQ}:
s_lshr_b32 s{sT0}, s{sWV}, 1
s_lshl_b32 s{sT0}, s{sT0}, 12
s_and_b32 s{sT1}, s{sWV}, 1
s_lshl_b32 s{sT1}, s{sT1}, 10
s_add_u32 s{sT0}, s{sT0}, s{sT1}
v_add_u32 v{vT0}, s{sT0}, v{vL16}
ds_write_b128 v{vT0}, {vr(PK,4)} offset:{L_QX}
ds_write_b128 v{vT0}, {vr(PK+4,4)} offset:{L_QX+2048}
{lD}:
s_waitcnt lgkmcnt(0)
s_add_u32 s{sRND}, s{sRND}, 1
s_cmp_lt_u32 s{sRND}, 3
s_cbranch_scc1 L_round
""")
    stamp(2)
    Q0, Q1 = 16, 20
    PP = 24
    S0, S1 = 32, 48
    C0, C1 = 64, 80
    O0, O1 = 96, 112
    KV = 128
    vVO = 3
    sU = sT4
    lp, lpd = e.lab("LP"), e.lab("LPD")
    e(f"""
s_and_b32 s{sU}, s{sWV}, 3
s_lshl_b32 s{sT0}, s{sG}, 10
s_add_u32 s{sT0}, s{sT0}, {WS_KVF}
s_mov_b32 s{sSPIN}, {cfg.spin}
{lp}:
buffer_load_dwordx4 {vr(S0,4)}, v{vL16}, {srd(WS)}, s{sT0} offen sc1
s_sub_u32 s{sSPIN}, s{sSPIN}, 1
s_cbranch_scc1 {lpd}
s_waitcnt vmcnt(0)
v_cmp_ne_u32 vcc, s{sTAG}, v{S0}
v_cmp_ne_u32 s[{sT2}:{sT2+1}], s{sTAG}, v{S0+1}
s_or_b64 vcc, vcc, s[{sT2}:{sT2+1}]
v_cmp_ne_u32 s[{sT2}:{sT2+1}], s{sTAG}, v{S0+2}
s_or_b64 vcc, vcc, s[{sT2}:{sT2+1}]
v_cmp_ne_u32 s[{sT2}:{sT2+1}], s{sTAG}, v{S0+3}
s_or_b64 vcc, vcc, s[{sT2}:{sT2+1}]
s_cbranch_vccnz {lp}
{lpd}:
s_waitcnt vmcnt(0)
s_lshl_b32 s{sT0}, s{sI}, 8
s_lshl_b32 s{sT1}, s{sG}, 5
s_add_u32 s{sT0}, s{sT0}, s{sT1}
s_lshl_b32 s{sT1}, s{sWV}, 2
s_add_u32 s{sHST}, s{sT0}, s{sT1}
v_mov_b32 v{vT0}, s{sTAG}
v_mov_b32 v{vT1}, {WS_HF}
s_mov_b64 exec, 1
buffer_store_dword v{vT0}, v{vT1}, {srd(WS)}, s{sHST} offen sc1
s_mov_b64 exec, -1
s_barrier
""")
    stamp(3)
    e(f"""
s_lshl_b32 s{sT0}, s{sG}, 2
s_add_u32 s{sT0}, s{sT0}, s{sU}
s_lshl_b32 s{sKVST}, s{sT0}, 17
s_add_u32 s{sKVST}, s{sKVST}, {WS_KV}
s_mul_i32 s{sT0}, s{sROLE}, {cfg.a_steps*2048}
s_add_u32 s{sKVO}, s{sKVST}, s{sT0}
s_cmp_eq_u32 s{sROLE}, 0
s_cselect_b32 s{sCNT}, {cfg.a_steps//4}, {(64-cfg.a_steps)//4}
s_mov_b32 s{sMODE}, s{sROLE}
v_lshrrev_b32 v{vT0}, 5, v{vLANE}
v_and_b32 v{vT1}, 15, v{vLANE}
v_lshlrev_b32 v{vVO}, 4, v{vT1}
v_lshl_add_u32 v{vVO}, v{vT0}, 8, v{vVO}
v_add_u32 v{vVO}, 1024, v{vVO}
s_lshl_b32 s{sT0}, s{sU}, 11
v_add_u32 v{vT0}, s{sT0}, v{vL16}
s_lshl_b32 s{sT0}, s{sU}, 10
v_add_u32 v{vT1}, s{sT0}, v{vL16}
ds_read_b128 {vr(Q0,4)}, v{vT0} offset:{L_QX}
ds_read_b128 {vr(Q1,4)}, v{vT0} offset:{L_QX+1024}
ds_read_b128 {vr(PP,4)}, v{vT1} offset:{L_KX}
""")
    for b in range(4):
        for j in range(8):
            e(f"v_mov_b32 v{KV+b*12+4+j}, s{sONES}")
    e(f"""
s_setprio 1
s_cmp_eq_u32 s{sROLE}, 0
s_cbranch_scc0 L_noprio
s_setprio 2
L_noprio:
s_waitcnt lgkmcnt(0)
v_mfma_f32_32x32x16_bf16 {vr(S0,16)}, {vr(PP,4)}, {vr(Q0,4)}, 0
v_mfma_f32_32x32x16_bf16 {vr(S1,16)}, {vr(PP,4)}, {vr(Q1,4)}, 0
s_nop 15
s_nop 3
""")
    def maxtree(dst, S, init=None):
        if init is None:
            e(f"v_max3_f32 v{dst}, v{S}, v{S+1}, v{S+2}")
            rest = list(range(3, 16))
            e(f"v_max_f32 v{dst}, v{dst}, v{S+15}")
            rest = rest[:-1]
        else:
            rest = list(range(16))
        for j in range(0, len(rest), 2):
            e(f"v_max3_f32 v{dst}, v{dst}, v{S+rest[j]}, v{S+rest[j+1]}")
    maxtree(vT0, S0)
    maxtree(vT1, S1)
    e("L_setmax:")
    e(f"""
v_mov_b32 v{C0}, v{vT0}
v_mov_b32 v{C1}, v{vT1}
s_nop 1
v_permlane32_swap_b32 v{C0}, v{vT0}
v_permlane32_swap_b32 v{C1}, v{vT1}
s_nop 1
v_max_f32 v{vT0}, v{vT0}, v{C0}
v_max_f32 v{vT1}, v{vT1}, v{C1}
""")
    def kv_loads(b, odd):
        o = 2048 if odd else 0
        e(f"""
buffer_load_dwordx4 {vr(KV+b*12,4)}, v{vL16}, {srd(WS)}, s{sKVO} offen offset:{o} sc1
s_mov_b64 exec, s[{sVMASK}:{sVMASK+1}]
buffer_load_dwordx4 {vr(KV+b*12+4,4)}, v{vVO}, {srd(WS)}, s{sKVO} offen offset:{o} sc1
buffer_load_dwordx4 {vr(KV+b*12+8,4)}, v{vVO}, {srd(WS)}, s{sKVO} offen offset:{o+512} sc1
s_mov_b64 exec, -1
""")
        if odd:
            e(f"s_add_u32 s{sKVO}, s{sKVO}, 4096")
    kv_loads(0, False); kv_loads(1, True); kv_loads(2, False)
    for j in range(16):
        e(f"v_sub_f32 v{C0+j}, 0, v{vT0}")
        e(f"v_sub_f32 v{C1+j}, 0, v{vT1}")
    for j in range(0, 32, 2):
        e(f"v_mov_b64 {vr(O0+j,2)}, 0")
    e(f"v_mov_b64 {vr(PP+4,2)}, 0\nv_mov_b64 {vr(PP+6,2)}, 0")
    for j in range(4):
        e(f"v_mov_b32 v{KV+3*12+8+j}, s{sONES}")
    e(f"""
s_waitcnt vmcnt(6)
v_mfma_f32_32x32x16_bf16 {vr(S0,16)}, {vr(KV,4)}, {vr(Q0,4)}, {vr(C0,16)}
s_nop 15
""")
    stamp(4)
    e(".p2align 6\nL_att:")
    def ex(S, a, b):
        for j in range(a, b):
            e(f"v_exp_f32 v{S+j}, v{S+j}")
    def cv(S, a, b):
        for j in range(a, b):
            e(f"v_cvt_pk_bf16_f32 v{PP+j}, v{S+2*j}, v{S+2*j+1}")
    for s in range(4):
        b = s; pb = (s - 1) & 3; nb = (s + 1) & 3
        K = lambda bb: vr(KV + bb*12, 4)
        V0 = lambda bb: vr(KV + bb*12 + 4, 4)
        V1 = lambda bb: vr(KV + bb*12 + 8, 4)
        ex(S0, 0, 4)
        e(f"v_mfma_f32_32x32x16_bf16 {vr(O1,16)}, {V1(pb)}, {vr(PP+4,4)}, {vr(O1,16)}")
        kv_loads(pb, (s + 3) & 1 == 1)
        ex(S0, 4, 8)
        cv(S0, 0, 4)
        e(f"v_mfma_f32_32x32x16_bf16 {vr(S1,16)}, {K(b)}, {vr(Q1,4)}, {vr(C1,16)}")
        ex(S0, 8, 12)
        e(f"v_mfma_f32_32x32x16_bf16 {vr(O0,16)}, {V0(b)}, {vr(PP,4)}, {vr(O0,16)}")
        ex(S0, 12, 16)
        cv(S0, 4, 8)
        ex(S1, 0, 4)
        e(f"v_mfma_f32_32x32x16_bf16 {vr(O0,16)}, {V1(b)}, {vr(PP+4,4)}, {vr(O0,16)}")
        ex(S1, 4, 8)
        cv(S1, 0, 4)
        e("s_waitcnt vmcnt(6)")
        e(f"v_mfma_f32_32x32x16_bf16 {vr(S0,16)}, {K(nb)}, {vr(Q0,4)}, {vr(C0,16)}")
        ex(S1, 8, 12)
        e(f"v_mfma_f32_32x32x16_bf16 {vr(O1,16)}, {V0(b)}, {vr(PP,4)}, {vr(O1,16)}")
        if s == 3:
            e(f"s_sub_u32 s{sCNT}, s{sCNT}, 1")
            e(f"s_cmp_lg_u32 s{sCNT}, 0")
        ex(S1, 12, 16)
        cv(S1, 4, 8)
    e(f"""
s_cbranch_scc1 L_att
s_nop 1
v_mfma_f32_32x32x16_bf16 {vr(O1,16)}, {vr(KV+3*12+8,4)}, {vr(PP+4,4)}, {vr(O1,16)}
s_mul_i32 s{sT0}, s{sU}, 4608
s_add_u32 s{sT0}, s{sT0}, {L_PARK}
v_add_u32 v{vT0}, s{sT0}, v{vL16}
v_lshl_add_u32 v{vT1}, v{vLANE}, 2, s{sT0}
s_waitcnt vmcnt(0)
s_nop 12
s_cmp_eq_u32 s{sMODE}, 1
s_cbranch_scc1 L_bwave
s_cmp_eq_u32 s{sMODE}, 2
s_cbranch_scc1 L_norm
""")
    stamp(5)
    e(f"""
s_setprio 0
ds_write_b128 v{vT0}, {vr(O0,4)}
ds_write_b128 v{vT0}, {vr(O0+4,4)} offset:1024
ds_write_b32 v{vT1}, v{O0+8} offset:2048
ds_write_b128 v{vT0}, {vr(O1,4)} offset:2304
ds_write_b128 v{vT0}, {vr(O1+4,4)} offset:{2304+1024}
ds_write_b32 v{vT1}, v{O1+8} offset:{2304+2048}
""")
    G = 16
    W2F = 80
    HF = 96
    NWIN = 14
    vL4 = 5
    vW2O, vW2T = 4, 7
    sREG = sWR
    lp, lpd = e.lab("LP"), e.lab("LPD")
    e(f"""
v_lshlrev_b32 v{vL4}, 2, v{vLANE}
s_lshl_b32 s{sT0}, s{sI}, 8
s_add_u32 s{sT0}, s{sT0}, {WS_HF}
s_mov_b32 s{sSPIN}, {cfg.spin}
{lp}:
buffer_load_dword v{W2F}, v{vL4}, {srd(WS)}, s{sT0} offen sc1
s_sub_u32 s{sSPIN}, s{sSPIN}, 1
s_cbranch_scc1 {lpd}
s_waitcnt vmcnt(0)
v_cmp_ne_u32 vcc, s{sTAG}, v{W2F}
s_cbranch_vccnz {lp}
{lpd}:
s_waitcnt vmcnt(0)
s_mov_b32 s{W}, s{pW2}
s_mov_b32 s{W+1}, s{pW2+1}
s_mov_b32 s{W+2}, 0x158000
v_lshrrev_b32 v{vT0}, 3, v{vLANE}
v_lshl_add_u32 v{vW2O}, v{vT0}, 10, v{vWP}
s_lshl_b32 s{sREG}, s{sU}, 15
s_add_u32 s{sREG}, s{sREG}, {L_REG}
s_mul_i32 s{sSTART}, s{sU}, {352*1024}
s_lshl_b32 s{sT0}, s{sG}, 7
s_add_u32 s{sSTART}, s{sSTART}, s{sT0}
s_mul_i32 s{sINC}, s{sU}, {22*2048}
""")
    def trP(dst):
        e(f"""
v_bfe_u32 v{vT0}, v{vLANE}, 2, 2
v_lshrrev_b32 v{vT1}, 5, v{vLANE}
v_lshl_add_u32 v{dst}, v{vT1}, 2, v{vT0}
v_lshlrev_b32 v{dst}, 7, v{dst}
v_bfe_u32 v{vT0}, v{vLANE}, 3, 1
v_lshl_add_u32 v{dst}, v{vT0}, 6, v{dst}
v_bfe_u32 v{vT0}, v{vLANE}, 4, 1
v_lshl_add_u32 v{dst}, v{vT0}, 5, v{dst}
v_and_b32 v{vT0}, 3, v{vLANE}
v_lshl_add_u32 v{dst}, v{vT0}, 3, v{dst}
v_add_u32 v{dst}, s{sREG}, v{dst}
v_xor_b32 v{dst+1}, 64, v{dst}
""")
    trP(vW2T)
    def f2_issue(k):
        slot = (k % 16) * 2048
        hb = HF + (k % NWIN) * 8
        e(f"""
s_add_u32 m0, s{sREG}, {slot}
s_add_u32 s{sT0}, s{sSTART}, {k*16*1024}
buffer_load_dwordx4 v{vW2O}, {srd(W)}, s{sT0} offen lds
s_add_u32 m0, s{sREG}, {slot+1024}
s_add_u32 s{sT0}, s{sSTART}, {k*16*1024+8192}
buffer_load_dwordx4 v{vW2O}, {srd(W)}, s{sT0} offen lds
s_add_u32 s{sT0}, s{sINC}, {k*2048}
buffer_load_dwordx4 {vr(hb,4)}, v{vL16}, {srd(H)}, s{sT0} offen sc1
buffer_load_dwordx4 {vr(hb+4,4)}, v{vL16}, {srd(H)}, s{sT0} offen offset:1024 sc1
""")
    def f2_reads(k):
        slot = (k % 16) * 2048
        b = W2F + (k & 1) * 8
        for ch in range(2):
            e(f"ds_read_b64_tr_b16 {vr(b+ch*4,2)}, v{vW2T+ch} offset:{slot}")
            e(f"ds_read_b64_tr_b16 {vr(b+ch*4+2,2)}, v{vW2T+ch} offset:{slot+1024}")
    def wo_issue(m):
        e(f"""
s_add_u32 m0, s{sREG}, {16384 + m*1024}
s_add_u32 s{sT0}, s{sSTART}, {m*8192}
buffer_load_dwordx4 v{vW2O}, {srd(W)}, s{sT0} offen lds
""")
    NK = 22
    ops = []
    for k in range(NWIN - 1):
        f2_issue(k); ops += [k] * 4
    def wait_for(k):
        last = max(i for i, t in enumerate(ops) if t == k)
        n = len(ops) - 1 - last
        e(f"s_waitcnt vmcnt({n})")
    wait_for(0)
    f2_reads(0)
    for k in range(NK):
        if k + NWIN - 1 < NK:
            f2_issue(k + NWIN - 1); ops += [k + NWIN - 1] * 4
        if k == 17:
            e(f"""
s_mov_b32 s{W}, s{pWO}
s_mov_b32 s{W+1}, s{pWO+1}
s_mov_b32 s{W+2}, 0x80000
s_lshl_b32 s{sSTART}, s{sU}, 17
s_lshl_b32 s{sT0}, s{sG}, 7
s_add_u32 s{sSTART}, s{sSTART}, s{sT0}
""")
        if k >= 17 and k <= 20:
            for m in range(4):
                wo_issue((k - 17) * 4 + m); ops += [99]
        if k + 1 < NK:
            wait_for(k + 1)
            f2_reads(k + 1)
            e("s_waitcnt lgkmcnt(4)")
        else:
            e("s_waitcnt lgkmcnt(0)")
        b = W2F + (k & 1) * 8
        hb = HF + (k % NWIN) * 8
        for r in range(2):
            for ch in range(2):
                g = G + (r * 2 + ch) * 16
                c = "0" if k == 0 else vr(g, 16)
                e(f"v_mfma_f32_32x32x16_bf16 {vr(g,16)}, {vr(b+ch*4,4)}, {vr(hb+r*4,4)}, {c}")
    def part_base(dst, sreg):
        e(f"""
v_and_b32 v{vT0}, 31, v{vLANE}
v_lshrrev_b32 v{vT1}, 5, v{vLANE}
v_xor_b32 v{vT1}, v{vT1}, v{vLANE}
v_and_b32 v{vT1}, 15, v{vT1}
v_lshlrev_b32 v{dst}, 8, v{vT0}
v_lshl_add_u32 v{dst}, v{vT1}, 4, v{dst}
v_add_u32 v{dst}, s{sreg}, v{dst}
""")
    vPB = 9
    part_base(vPB, sREG)
    e("s_nop 8")
    for ch in range(2):
        for q in range(4):
            x = (ch * 8 + 2 * q) << 4
            if x:
                e(f"v_xor_b32 v{vT0}, {x}, v{vPB}")
                a = vT0
            else:
                a = vPB
            for r in range(2):
                e(f"ds_write_b128 v{a}, {vr(G+(r*2+ch)*16+q*4,4)} offset:{r*8192}")
    e("s_waitcnt vmcnt(0) lgkmcnt(0)")
    stamp(6)
    e("s_barrier\ns_branch L_tail")
    e("L_bwave:")
    stamp(5)
    e(f"""
s_barrier
ds_read_b128 {vr(S0,4)}, v{vT0}
ds_read_b128 {vr(S0+4,4)}, v{vT0} offset:1024
ds_read_b32 v{S0+8}, v{vT1} offset:2048
ds_read_b128 {vr(S1,4)}, v{vT0} offset:2304
ds_read_b128 {vr(S1+4,4)}, v{vT0} offset:{2304+1024}
ds_read_b32 v{S1+8}, v{vT1} offset:{2304+2048}
s_waitcnt lgkmcnt(0)
""")
    for j in range(9):
        e(f"v_add_f32 v{O0+j}, v{O0+j}, v{S0+j}")
        e(f"v_add_f32 v{O1+j}, v{O1+j}, v{S1+j}")
    e(f"""
v_mov_b32 v{vT0}, {hex(f2u(2.0**60))}
v_cmp_nlt_f32 vcc, v{O0+8}, v{vT0}
v_cmp_nlt_f32 s[{sT2}:{sT2+1}], v{O1+8}, v{vT0}
s_or_b64 vcc, vcc, s[{sT2}:{sT2+1}]
""")
    if cfg.force_slow:
        e("s_branch L_slow")
    else:
        e("s_cbranch_vccnz L_slow")
    e(f"""
L_norm:
v_rcp_f32 v{vT0}, v{O0+8}
v_rcp_f32 v{vT1}, v{O1+8}
s_lshl_b32 s{sT0}, s{sI}, 16
s_lshl_b32 s{sT1}, s{sG}, 13
s_add_u32 s{sT0}, s{sT0}, s{sT1}
s_lshl_b32 s{sT1}, s{sU}, 11
s_add_u32 s{sT0}, s{sT0}, s{sT1}
s_add_u32 s{sT0}, s{sT0}, {WS_O}
""")
    for j in range(8):
        e(f"v_mul_f32 v{O0+j}, v{O0+j}, v{vT0}")
        e(f"v_mul_f32 v{O1+j}, v{O1+j}, v{vT1}")
    for j in range(4):
        e(f"v_cvt_pk_bf16_f32 v{PP+j}, v{O0+2*j}, v{O0+2*j+1}")
    for j in range(4):
        e(f"v_cvt_pk_bf16_f32 v{PP+4+j}, v{O1+2*j}, v{O1+2*j+1}")
    e(f"""
buffer_store_dwordx4 {vr(PP,4)}, v{vL16}, {srd(WS)}, s{sT0} offen sc1
buffer_store_dwordx4 {vr(PP+4,4)}, v{vL16}, {srd(WS)}, s{sT0} offen offset:1024 sc1
v_mov_b32 v{vT0}, s{sTAG}
v_mov_b32 v{vT1}, {WS_OF}
s_waitcnt vmcnt(0)
s_mov_b64 exec, 1
buffer_store_dword v{vT0}, v{vT1}, {srd(WS)}, s{sHST} offen sc1
s_mov_b64 exec, -1
""")
    stamp(6)
    GA = 16
    TM = 24
    XR = 56
    vRA, vOA = 9, 10
    WOF = 64
    OF = 128
    SA = 160
    e(f"""
L_tail:
v_lshrrev_b32 v{vT0}, 3, v0               ; row
v_and_b32 v{vT1}, 7, v0
v_lshlrev_b32 v{vOA}, 10, v{vT0}
v_lshl_add_u32 v{vOA}, v{vT1}, 4, v{vOA}
s_lshl_b32 s{sT0}, s{sI}, 16
s_lshl_b32 s{sT1}, s{sG}, 7
s_add_u32 s{sKVO}, s{sT0}, s{sT1}
buffer_load_dwordx4 {vr(XR,4)}, v{vOA}, {srd(X)}, s{sKVO} offen
v_lshlrev_b32 v{vT1}, 1, v{vT1}
v_xor_b32 v{vT1}, v{vT1}, v{vT0}
v_and_b32 v{vT1}, 15, v{vT1}
v_lshlrev_b32 v{vRA}, 8, v{vT0}
v_lshl_add_u32 v{vRA}, v{vT1}, 4, v{vRA}
v_add_u32 v{vRA}, {L_REG}, v{vRA}
v_xor_b32 v11, 16, v{vRA}
v_add_u32 v12, 0x10000, v{vRA}
v_add_u32 v8, 0x10000, v11
""")
    def read_parts():
        for p in range(4):
            a0, a1 = (vRA, 11) if p < 2 else (12, 8)
            o = (p & 1) * 32768
            e(f"ds_read_b128 {vr(TM+p*8,4)}, v{a0} offset:{o}")
            e(f"ds_read_b128 {vr(TM+p*8+4,4)}, v{a1} offset:{o}")
    def sum_parts():
        for j in range(0, 8, 2):
            e(f"v_pk_add_f32 {vr(TM+j,2)}, {vr(TM+j,2)}, {vr(TM+8+j,2)}")
            e(f"v_pk_add_f32 {vr(TM+16+j,2)}, {vr(TM+16+j,2)}, {vr(TM+24+j,2)}")
        for j in range(0, 8, 2):
            e(f"v_pk_add_f32 {vr(TM+j,2)}, {vr(TM+j,2)}, {vr(TM+16+j,2)}")
    read_parts()
    e(f"""
s_lshr_b32 s{sT0}, s{sWV}, 1
s_lshl_b32 s{sREG}, s{sT0}, 15
s_add_u32 s{sREG}, s{sREG}, {L_REG}
""")
    vWOT = 6
    trP(vWOT)
    e("s_waitcnt lgkmcnt(0)")
    for s in range(8):
        for ch in range(2):
            b = WOF + (s * 2 + ch) * 4
            e(f"ds_read_b64_tr_b16 {vr(b,2)}, v{vWOT+ch} offset:{16384 + s*2048}")
            e(f"ds_read_b64_tr_b16 {vr(b+2,2)}, v{vWOT+ch} offset:{16384 + s*2048 + 1024}")
            if s & 1 and ch == 1:
                e("s_waitcnt lgkmcnt(4)")
    sum_parts()
    for j in range(8):
        e(f"v_mul_f32 v{GA+j}, {hex(f2u(-math.log2(math.e)))}, v{TM+j}")
    for j in range(8):
        e(f"v_exp_f32 v{GA+j}, v{GA+j}")
    e("s_nop 0")
    for j in range(8):
        e(f"v_add_f32 v{GA+j}, 1.0, v{GA+j}")
    for j in range(8):
        e(f"v_rcp_f32 v{GA+j}, v{GA+j}")
    e("s_nop 0")
    for j in range(8):
        e(f"v_mul_f32 v{GA+j}, v{GA+j}, v{TM+j}")
    lp, lpd = e.lab("LP"), e.lab("LPD")
    e(f"""
s_waitcnt lgkmcnt(0)
s_barrier
v_lshlrev_b32 v{vL4}, 2, v{vLANE}
v_or_b32 v{vL4}, 16, v{vL4}
s_lshl_b32 s{sT0}, s{sI}, 8
s_add_u32 s{sT0}, s{sT0}, {WS_OF}
s_mov_b32 s{sSPIN}, {cfg.spin}
{lp}:
buffer_load_dword v{OF}, v{vL4}, {srd(WS)}, s{sT0} offen sc1
s_sub_u32 s{sSPIN}, s{sSPIN}, 1
s_cbranch_scc1 {lpd}
s_waitcnt vmcnt(0)
v_cmp_ne_u32 vcc, s{sTAG}, v{OF}
s_cbranch_vccnz {lp}
{lpd}:
s_waitcnt vmcnt(0)
""")
    stamp(7)
    e(f"""
s_lshl_b32 s{sT0}, s{sI}, 16
s_lshr_b32 s{sT1}, s{sWV}, 1
s_lshl_b32 s{sT1}, s{sT1}, 14
s_add_u32 s{sT0}, s{sT0}, s{sT1}
s_and_b32 s{sT2}, s{sWV}, 1
s_lshl_b32 s{sT1}, s{sT2}, 10
s_add_u32 s{sT0}, s{sT0}, s{sT1}
s_add_u32 s{sT0}, s{sT0}, {WS_O}
""")
    for s in range(8):
        if s and s % 2 == 0:
            e(f"s_add_u32 s{sT0}, s{sT0}, 4096")
        e(f"buffer_load_dwordx4 {vr(OF+s*4,4)}, v{vL16}, {srd(WS)}, s{sT0} offen offset:{(s&1)*2048} sc1")
    e(f"""
s_lshl_b32 s{sT1}, s{sT2}, 13
s_add_u32 s{sREG}, s{sREG}, s{sT1}
""")
    vPB = 7
    part_base(vPB, sREG)
    lne = e.lab()
    e(f"""
s_or_b32 s{sT1}, s2, s{sWV}
s_cmp_lg_u32 s{sT1}, 0
s_cbranch_scc1 {lne}
v_mov_b32 v{vT0}, s{sTAG}
v_mov_b32 v{vT1}, {WS_EPOCH}
s_mov_b64 exec, 1
buffer_store_dword v{vT0}, v{vT1}, {srd(WS)}, 0 offen sc1
s_mov_b64 exec, -1
s_waitcnt vmcnt(0)
{lne}:
""")
    for s in range(8):
        e(f"s_waitcnt vmcnt({7-s})")
        for ch in range(2):
            c = "0" if s == 0 else vr(SA + ch*16, 16)
            e(f"v_mfma_f32_32x32x16_bf16 {vr(SA+ch*16,16)}, {vr(WOF+(s*2+ch)*4,4)}, {vr(OF+s*4,4)}, {c}")
    e("s_nop 15")
    for ch in range(2):
        for q in range(4):
            x = (ch * 8 + 2 * q) << 4
            if x:
                e(f"v_xor_b32 v{vT0}, {x}, v{vPB}")
                a = vT0
            else:
                a = vPB
            e(f"ds_write_b128 v{a}, {vr(SA+ch*16+q*4,4)}")
    e("s_waitcnt lgkmcnt(0)\ns_barrier")
    read_parts()
    for j in range(4):
        e(f"v_lshlrev_b32 v{WOF+2*j}, 16, v{XR+j}")
        e(f"v_and_b32 v{WOF+2*j+1}, 0xffff0000, v{XR+j}")
    e("s_waitcnt lgkmcnt(0)")
    sum_parts()
    for j in range(0, 8, 2):
        e(f"v_pk_fma_f32 {vr(TM+j,2)}, {vr(TM+j,2)}, {vr(GA+j,2)}, {vr(WOF+j,2)}")
    for j in range(4):
        e(f"v_cvt_pk_bf16_f32 v{XR+j}, v{TM+2*j}, v{TM+2*j+1}")
    e(f"buffer_store_dwordx4 {vr(XR,4)}, v{vOA}, {srd(OUT)}, s{sKVO} offen")
    if cfg.stamps:
        e("s_waitcnt vmcnt(0)")
        stamp(8)
        e(f"""
s_memrealtime s[88:89]
s_waitcnt lgkmcnt(0)
v_writelane_b32 v15, s86, 14
v_writelane_b32 v15, s88, 15
s_lshl_b32 s{sT0}, s2, 3
s_add_u32 s{sT0}, s{sT0}, s{sWV}
s_lshl_b32 s{sT0}, s{sT0}, 6
s_add_u32 s{sT0}, s{sT0}, 0x8000000
v_lshlrev_b32 v{vT0}, 2, v{vLANE}
s_mov_b64 exec, 0xffff
buffer_store_dword v15, v{vT0}, {srd(WS)}, s{sT0} offen
""")
    e("L_exit:\ns_endpgm")
    e(f"""
L_slow:
s_mov_b32 s{sKVO}, s{sKVST}
s_mov_b32 s{sCNT}, 64
v_mov_b32 v{vT0}, 0xff800000
v_mov_b32 v{vT1}, 0xff800000
L_slow_loop:
buffer_load_dwordx4 {vr(KV,4)}, v{vL16}, {srd(WS)}, s{sKVO} offen sc1
s_add_u32 s{sKVO}, s{sKVO}, 2048
s_waitcnt vmcnt(0)
v_mfma_f32_32x32x16_bf16 {vr(S0,16)}, {vr(KV,4)}, {vr(Q0,4)}, 0
v_mfma_f32_32x32x16_bf16 {vr(S1,16)}, {vr(KV,4)}, {vr(Q1,4)}, 0
s_nop 15
s_nop 3
""")
    maxtree(vT0, S0, init=True)
    maxtree(vT1, S1, init=True)
    e(f"""
s_sub_u32 s{sCNT}, s{sCNT}, 1
s_cmp_lg_u32 s{sCNT}, 0
s_cbranch_scc1 L_slow_loop
s_mov_b32 s{sKVO}, s{sKVST}
s_mov_b32 s{sCNT}, 16
s_mov_b32 s{sMODE}, 2
s_branch L_setmax
""")
    hdr = f"""; Fused kernel: LayerNorm -> QKV / FFN1 GEMMs -> attention (+FFN2) -> out projection + gate.
; @launch grid=(256,1,1) block=(512,1,1) lds=163840
.amdgcn_target "amdgcn-amd-amdhsa--gfx950"
.text
.globl {cfg.kname}
.p2align 8
.type {cfg.kname},@function
{cfg.kname}:
"""
    ftr = f""".section .rodata,"a"
.p2align 6
.amdhsa_kernel {cfg.kname}
  .amdhsa_next_free_vgpr 256
  .amdhsa_next_free_sgpr 102
  .amdhsa_accum_offset 256
  .amdhsa_group_segment_fixed_size 0
  .amdhsa_kernarg_size 72
  .amdhsa_user_sgpr_count 2
  .amdhsa_user_sgpr_kernarg_segment_ptr 1
  .amdhsa_system_sgpr_workgroup_id_x 1
.end_amdhsa_kernel
"""
    return hdr + e.text() + ftr

if __name__ == "__main__":
    cfg = Cfg()
    out = f"cdna_kernels/{NAME}.s"
    for a in sys.argv[1:]:
        k, v = a.split("=")
        if k == "out":
            out = v
        else:
            setattr(cfg, k, type(getattr(cfg, k))(int(v)) if not isinstance(getattr(cfg, k), str) else v)
    open(out, "w").write(gen(cfg))
    print("wrote", out)
```

```python
import sys, struct, math

NAME = "recurrent_scan__softmax_full_mha__dense_activation_relu__prompt"

def f2u(x):
    return struct.unpack("<I", struct.pack("<f", x))[0]

class Cfg:
    stamps = 0
    rt = 0
    kname = NAME + "_kernel"
    force_slow = 0
    spin = 200000
    ctouch = 1
    lnsplit = 4
    nolagA = 1
    kvrot = 1
    orot = 1
    fl = 32
    qpub = 12
    epace = 3
    U = 1
    kdel = 18
    ehold = 2
    hw = 12
    e0it = 5
    npre = 3
    pf = 0
    sf = 0
    opre = 0
    osl = 0
    dlate = 1
    dbg_pad = 0
    dbg_at = 0
    xmap = 0
    qsplit = 4
    a2pre = 0
    supos = 0
    ost = 1
    fastpro = 1
    xp = 0
    ft = 1
    ft1 = 4
    epre = 1
    nopre = 0
    edel = 0
    owarm = 0
    w2 = 0
    ldpos = 0
    pt = 0
    vm = 0
    pshift = 21
    kvx = 0
    frot = 0
    e23 = 1
    fbp = 1
    pm2 = 0
    ksleep = 4
    NB = 4
    early = 6
    ft2 = 0
    stouch = 0
    vt = 0
    vtpos = 2
    pace = 2
    dpace = 4
    hlead = 3
    ddelay = 1
    mearly = 0
    dearly = 1
    pm = 0
    pv = 0
    psleep = 4

WS_EPOCH = 0x0
WS_KVF = 0x8000
WS_HF = 0x20000
WS_OF = 0x40000
WS_KV = 0x100000
WS_H = 0x900000
H_BLK = 86 * 2048
WS_O = 0xF00000
WS_SIZE = 0x1100000

L_QX = 0
L_KX = 8192
L_FB = 12288
L_REG = 32768
XHI = L_REG + 3 * 32768

class E:
    def __init__(self):
        self.L = []
        self.nlab = 0
    def __call__(self, s):
        for line in s.strip("\n").split("\n"):
            line = line.rstrip()
            if not line.strip():
                continue
            if line.strip().endswith(":") and " " not in line.strip():
                self.L.append(line.strip())
            else:
                self.L.append("    " + line.strip())
    def lab(self, p="L"):
        self.nlab += 1
        return f"{p}_{self.nlab}"
    def text(self):
        return "\n".join(self.L) + "\n"

def vr(a, n):
    return f"v[{a}:{a+n-1}]"
MF = "v_mfma_f32_32x32x16_bf16"

def gen(cfg):
    e = E()
    NB = cfg.NB
    names = []
    def stamp(name, lvl=1):
        if cfg.stamps and (lvl == 1 or cfg.stamps == lvl):
            name = str(name)
            if name not in names: names.append(name)
            e("s_memrealtime s[84:85]\ns_waitcnt lgkmcnt(0)" if cfg.rt else "s_memtime s[84:85]\ns_waitcnt lgkmcnt(0)\ns_sub_u32 s84, s84, s82")
            e(f"v_writelane_b32 v15, s84, {names.index(name)}")
    X, W, WS, H, OUT = 4, 8, 12, 16, 20
    sWV, sI, sG, sROT, sTAG, sFLG = 24, 25, 26, 27, 28, 29
    sRD, sWR, sR, sSTART, sINC, sKVF = 30, 31, 32, 33, 34, 35
    sCST, sDST, sOK, sWRD = 36, 37, 38, 39
    sOFL = 44
    sN, sP0, sTH, sW2B, sHB2, sWX = 40, 41, 42, 43, 45, 47
    sONES = 46
    sVMASK = 50
    sT0, sT1, sT2, sT3 = 52, 53, 54, 55
    sKVST, sHST, sROLE, sCNT, sKVO, sREG = 56, 57, 58, 59, 60, 61
    sSPIN, sU = 62, 63
    pX, pWQKV, pWO, pBX, pW1, pW2, pOUT, pDBG, pWS = 64, 66, 68, 70, 72, 74, 76, 78, 80
    sPJ = 90
    RET = 94
    TS = 96
    KD = H
    srd = lambda b: f"s[{b}:{b+3}]"
    vLANE, vL16, vVO, vWO, vWC, vWT, vVS, vDUM, vONE, vT0, vT1 = 1, 2, 3, 4, 6, 8, 10, 11, 12, 13, 14
    vS1a, vS1b, vS2a, vS2b, vRS, vNM, vXW, vWROW, vXO = 16, 17, 18, 19, 20, 22, 24, 26, 27
    ACC, WF, ACC2 = 16, 32, 96
    PK = 96
    vXA, vW4, vWB, vWP = 112, 116, 120, 127
    XF = 128
    XRAW, XUN = 128, 160
    QQ, PP = 16, 240
    S0, S1, CC, OO = 32, 48, 64, 128
    KV = 192
    sSTR, sQS, QB = 42, 43, 40
    L_PARK = 13312

    st = {"ops": []}
    def op(tag, n=1): st["ops"].extend([tag] * n)
    def wait_tag(tag):
        ops = st["ops"]
        idx = [i for i, t in enumerate(ops) if t == tag]
        if idx:
            e(f"s_waitcnt vmcnt({len(ops) - 1 - max(idx)})")
    def flag_store(base, soff):
        e(f"""
v_mov_b32 v{vT0}, s{sTAG}
v_lshrrev_b32 v{vT1}, 2, v{vL16}
v_add_u32 v{vT1}, {base}, v{vT1}
s_mov_b32 exec_lo, {hex((1 << cfg.fl) - 1)}
s_mov_b32 exec_hi, 0
buffer_store_dword v{vT0}, v{vT1}, {srd(WS)}, s{soff} offen {['sc1', 'sc0 sc1'][cfg.sf]}
s_mov_b64 exec, -1
""")
    def poll1(vdst, vaddr, soff, first=0):
        lp, lpd = e.lab("LP"), e.lab("LPD")
        e(f"""
s_mov_b32 s{sSPIN}, {cfg.spin}
{lp}:
{f"s_sleep {first}" if first else ""}
buffer_load_dword v{vdst}, v{vaddr}, {srd(WS)}, s{soff} offen {['sc1', 'sc0 sc1', 'sc1 nt', 'sc0 sc1 nt'][cfg.pf]}
s_waitcnt vmcnt(0)
v_cmp_ne_u32 vcc, s{sTAG}, v{vdst}
s_cbranch_vccz {lpd}
{f's_sleep {cfg.psleep}' if cfg.psleep and not first else ''}
s_sub_u32 s{sSPIN}, s{sSPIN}, 1
s_cbranch_scc0 {lp}
{lpd}:
""")

    def lds_wait(off, n, a=3, sl=1):
        lp, lpd = e.lab("LW"), e.lab("LWD")
        e(f"""
s_mov_b32 s{sSPIN}, {cfg.spin * 8}
{lp}:
ds_read_b32 v{vT0}, v{a} offset:{off}
s_waitcnt lgkmcnt(0)
v_cmp_le_u32 vcc, {n}, v{vT0}
s_cbranch_vccnz {lpd}
s_sleep {sl}
s_sub_u32 s{sSPIN}, s{sSPIN}, 1
s_cbranch_scc0 {lp}
{lpd}:
""")
    e(f"""
s_load_dwordx2 s[{X}:{X+1}], s[0:1], 0
s_cmp_ge_u32 s2, 256
s_cbranch_scc1 L_exit
s_setprio 3
s_load_dwordx16 s[64:79], s[0:1], 0
s_load_dwordx2 s[80:81], s[0:1], 64
""")
    if cfg.stamps:
        e("s_memtime s[82:83]\ns_memrealtime s[86:87]\nv_mov_b32 v15, 0")
    e(f"""
s_lshl_b32 s{sT2}, s2, {[3, 4, 2][cfg.xmap]}
s_and_b32 s{sT2}, s{sT2}, {[24, 16, 28][cfg.xmap]}
s_bfe_u32 s{sT3}, s2, {['0x30003', '0x40003', '0x20003'][cfg.xmap]}
s_or_b32 s{sI}, s{sT2}, s{sT3}
s_and_b32 s{sT2}, s2, {[4, 6, 0][cfg.xmap]}
s_lshr_b32 s{sT3}, s2, {[6, 7, 5][cfg.xmap]}
s_or_b32 s{sG}, s{sT2}, s{sT3}
s_add_u32 s{sROT}, s{sI}, s{sG}
s_and_b32 s{sPJ}, s{sROT}, 3
s_add_u32 s{sROT}, s{sROT}, 1
s_and_b32 s{sPJ+1}, s{sROT}, 3
v_lshrrev_b32 v{vT0}, 3, v0
v_and_b32 v{vT1}, 7, v0
v_lshlrev_b32 v{vXO}, 4, v{vT1}
v_lshl_add_u32 v{vXO}, v{vT0}, 10, v{vXO}
s_lshl_b32 s{sT0}, s{sI}, 16
v_add_u32 v{vXO}, s{sT0}, v{vXO}
s_mov_b32 s{X+2}, 0x200000
s_mov_b32 s{X+3}, 0x00020000
s_waitcnt lgkmcnt(0)
""")
    def x_loads(half):
        for j in range(2*half, 2*half+2):
            e(f"s_lshl_b32 s{sT2}, s{sPJ+j}, 8")
            e(f"buffer_load_dwordx4 {vr(XRAW+j*8,4)}, v{vXO}, {srd(X)}, s{sT2} offen")
            e(f"buffer_load_dwordx4 {vr(XRAW+j*8+4,4)}, v{vXO}, {srd(X)}, s{sT2} offen offset:128")
            op(("x", 2*j)); op(("x", 2*j+1))
        e(f"s_setprio {2 - 2*half}")
    def vtouch():
        if not cfg.vt: return
        e(f"""
s_lshl_b32 s3, s2, 3
s_add_u32 s3, s3, s{sWV}
s_mul_i32 s{sT2}, s3, 768
v_lshl_add_u32 v30, v{vLANE}, 7, s{sT2}
v_min_u32 v31, {0x158000 - 4}, v30
s_lshl_b32 s3, s3, 8
v_lshl_add_u32 v28, v{vLANE}, 7, s3
s_mov_b64 exec, 63
""")
        if cfg.vt & 2:
            e(f"global_load_dword v29, v30, s[{pWQKV}:{pWQKV+1}]\nglobal_load_dword v29, v31, s[{pW1}:{pW1+1}]"); op("t", 2)
        if cfg.vt & 1:
            e(f"global_load_dword v29, v31, s[{pW2}:{pW2+1}]\ns_mov_b64 exec, 3\nglobal_load_dword v29, v28, s[{pWO}:{pWO+1}]"); op("t", 2)
        e("s_mov_b64 exec, -1")
    def ftouch(w2, w1):
        e(f"""
s_lshl_b32 s3, s2, 2
s_add_u32 s3, s3, s{sU}
s_mul_i32 s{sT0}, s3, 1408
v_lshl_add_u32 v125, v{vLANE}, 7, s{sT0}
v_min_u32 v125, {0x158000 - 4}, v125
s_mov_b64 exec, 0x7ff
""")
        if w1:
            e(f"global_load_dword v126, v125, s[{pW1}:{pW1+1}]"); op("t")
        if w2:
            e(f"""
global_load_dword v126, v125, s[{pW2}:{pW2+1}]
s_lshl_b32 s3, s3, 9
v_lshl_add_u32 v125, v{vLANE}, 7, s3
s_mov_b64 exec, 15
global_load_dword v126, v125, s[{pWO}:{pWO+1}]
"""); op("t", 2)
        e("s_mov_b64 exec, -1")
    def ptouch():
        e(f"""
v_lshlrev_b32 v28, {cfg.pshift}, v{vLANE}
v_add_u32 v28, 0x3000, v28
v_min_u32 v28, {WS_SIZE - 4}, v28
s_lshl_b32 s3, s2, 13
v_mov_b32 v30, s3
s_mov_b64 exec, {hex((1 << min(64, (WS_SIZE >> cfg.pshift) + 1)) - 1) if (WS_SIZE >> cfg.pshift) + 1 < 31 else -1}
global_load_dword v29, v28, s[{pWS}:{pWS+1}] sc1
s_mov_b64 exec, 1
global_load_dword v29, v30, s[{pOUT}:{pOUT+1}] sc1
s_mov_b64 exec, -1
""")
        op("t", 2)
    x_loads(0)
    e(f"""
s_load_dword s{sTAG}, s[{pWS}:{pWS+1}], {WS_EPOCH}
s_getpc_b64 s[88:89]
L_pc:
s_bfe_u32 s3, s2, 0x30003
s_mul_i32 s3, s3, 3
v_lshrrev_b32 v30, 6, v0
v_mul_u32_u24 v28, 24, v30
v_and_b32 v29, 3, v0
v_add3_u32 v28, v28, v29, s3
v_lshlrev_b32 v28, 7, v28
v_min_u32 v28, L_codeend-L_pc-4, v28
s_mov_b64 exec, 7
global_load_dword v29, v28, s[88:89]
s_mov_b64 exec, -1
v_readfirstlane_b32 s{sWV}, v30
v_and_b32 v{vLANE}, 63, v0
v_lshlrev_b32 v{vL16}, 4, v{vLANE}
s_xor_b32 s{sPJ+2}, s{sPJ}, 2
s_xor_b32 s{sPJ+3}, s{sPJ+1}, 2
""")
    op("ct")
    if cfg.pt == 1: ptouch()
    if cfg.vtpos == 0: vtouch()
    e(f"""
s_mov_b32 s{W}, s{pWQKV}
s_mov_b32 s{W+1}, s{pWQKV+1}
s_mov_b32 s{W+2}, 0x180000
s_mov_b32 s{W+3}, 0x00020000
v_bfe_u32 v{vXW}, v0, 4, 3
v_xor_b32 v{vXW}, v{vXW}, v{vT1}
v_lshlrev_b32 v{vXW}, 4, v{vXW}
v_lshl_add_u32 v{vXW}, v{vT0}, 7, v{vXW}
v_add_u32 v{vXW+1}, {XHI}, v{vXW}
v_lshrrev_b32 v{vWROW}, 3, v{vLANE}
v_bfe_u32 v{vT0}, v{vLANE}, 4, 1
v_lshlrev_b32 v{vT0}, 2, v{vT0}
v_xor_b32 v{vWP}, v{vT1}, v{vT0}
v_lshlrev_b32 v{vWP}, 4, v{vWP}
v_mul_u32_u24 v{vWO}, 3072, v{vWROW}
v_add_u32 v{vWO}, v{vWO}, v{vWP}
v_add_u32 v{vWO+1}, {8*3072-1024}, v{vWO}
v_lshl_add_u32 v{vWP}, v{vWROW}, 10, v{vWP}
s_lshr_b32 s{sROLE}, s{sWV}, 2
s_and_b32 s{sU}, s{sWV}, 3
s_and_b32 s{sR}, s{sWV}, 1
s_mul_i32 s{sSTART}, s{sU}, {16*3072}
s_lshl_b32 s{sT2}, s{sG}, 7
s_add_u32 s{sSTART}, s{sSTART}, s{sT2}
s_mul_i32 s{sT3}, s{sT2}, 3
s_mul_i32 s{sDST}, s{sU}, {16*2752}
s_add_u32 s{sDST}, s{sDST}, s{sT3}
s_mul_i32 s{sCST}, s{sWV}, {8*3072}
s_add_u32 s{sCST}, s{sCST}, s{sT2}
s_mov_b32 s{TS}, s{pW1}
s_mov_b32 s{TS+1}, s{pW1+1}
s_mov_b32 s{TS+2}, 0x158000
s_mov_b32 s{TS+3}, 0x00020000
s_mul_i32 s{sWR}, s{sWV}, 3072
s_add_u32 s{sWR}, s{sWR}, {L_REG}
s_mul_i32 s{sWRD}, s{sU}, 6144
s_add_u32 s{sWRD}, s{sWRD}, {L_REG}
s_lshl_b32 s{sINC}, s{sROLE}, 10
s_add_u32 s{sINC}, s{sINC}, s{sSTART}
s_add_u32 s{sINC}, s{sINC}, 1024
s_mov_b32 s{sONES}, 0x3f803f80
s_mov_b32 s{WS}, s{pWS}
s_mov_b32 s{WS+1}, s{pWS+1}
s_mov_b32 s{WS+2}, {0x10000000 if cfg.stamps else WS_SIZE}
s_mov_b32 s{WS+3}, 0x00020000
s_bfe_u32 s{sT1}, s{sWV}, 0x10001         ; ct
s_lshl_b32 s{sT3}, s{sG}, 1
s_add_u32 s{sT3}, s{sT3}, s{sT1}
s_lshl_b32 s{sKVST}, s{sT3}, 19
s_lshr_b32 s{sT3}, s{sI}, 1
s_lshl_b32 s{sT3}, s{sT3}, 2
s_and_b32 s{sT0}, s{sI}, 1
s_add_u32 s{sT3}, s{sT3}, s{sT0}
s_lshl_b32 s{sT3}, s{sT3}, 1
s_add_u32 s{sT3}, s{sT3}, s{sR}
s_lshl_b32 s{sT3}, s{sT3}, 11
s_add_u32 s{sKVST}, s{sKVST}, s{sT3}
s_add_u32 s{sKVST}, s{sKVST}, {WS_KV}
s_mul_i32 s{sT3}, s{sG}, 6
s_add_u32 s{sT3}, s{sT3}, s{sT1}
s_lshl_b32 s{sHST}, s{sT3}, 12
s_lshl_b32 s{sT3}, s{sR}, 10
s_add_u32 s{sHST}, s{sHST}, s{sT3}
s_lshl_b32 s{sRD}, s{sG}, 12
s_lshl_b32 s{sT3}, s{sI}, 7
s_add_u32 s{sKVF}, s{sRD}, s{sT3}
s_add_u32 s{sRD}, s{sRD}, {WS_KVF}
s_lshl_b32 s{sT0}, s{sI}, 12
s_lshl_b32 s{sT3}, s{sU}, 7
s_add_u32 s{sT0}, s{sT0}, s{sT3}
s_lshl_b32 s{sT3}, s{sG}, 9
s_add_u32 s{sFLG}, s{sT0}, s{sT3}
v_and_b32 v{vT0}, 31, v{vLANE}
v_bfe_u32 v{vT1}, v{vLANE}, 1, 3
v_lshrrev_b32 v{vONE}, 5, v{vLANE}        ; hh
v_xor_b32 v{vXA}, v{vONE}, v{vT1}
v_lshlrev_b32 v{vXA}, 4, v{vXA}
v_lshl_add_u32 v{vXA}, v{vT0}, 7, v{vXA}
s_lshl_b32 s{sT3}, s{sR}, 12
s_add_u32 s{sT3}, s{sT3}, {XHI}
v_add_u32 v{vXA}, s{sT3}, v{vXA}
v_xor_b32 v{vXA+1}, 32, v{vXA}
v_xor_b32 v{vXA+2}, 64, v{vXA}
v_xor_b32 v{vXA+3}, 0x60, v{vXA}
v_bfe_u32 v{vVS}, v{vLANE}, 4, 1
v_and_b32 v{vT1}, 3, v{vLANE}
v_lshlrev_b32 v{vWB+1}, 3, v{vT1}
v_lshl_add_u32 v{vWB+1}, v{vVS}, 5, v{vWB+1}
v_bfe_u32 v{vT0}, v{vLANE}, 3, 1
v_lshl_add_u32 v{vDUM}, v{vT0}, 6, v{vWB+1}    ; + (rr>>1)*64
v_bfe_u32 v{vT0}, v{vLANE}, 2, 2          ; rr
v_lshl_add_u32 v{vWB}, v{vONE}, 3, v{vT0}      ; 8hh+rr
v_lshl_add_u32 v{vWT}, v{vT0}, 7, v{vDUM}
s_lshl_b32 s{sT3}, s{sT1}, 6
v_xor_b32 v{vWT}, s{sT3}, v{vWT}
v_mul_u32_u24 v{vWT+1}, 3072, v{vONE}
v_add_u32 v{vWT}, v{vWT}, v{vWT+1}
v_add_u32 v{vWT}, {L_REG}, v{vWT}
v_add_u32 v{vWT+1}, 49152, v{vWT}
v_mul_u32_u24 v{vWB}, 384, v{vWB}
s_lshl_b32 s{sT3}, s{sT1}, 6
v_xor_b32 v{vWB+1}, s{sT3}, v{vDUM}
v_add_u32 v{vWB}, v{vWB}, v{vWB+1}
v_add_u32 v{vWB}, {L_REG}, v{vWB}
v_add_u32 v{vWB+1}, 0x10000, v{vWB}
v_lshl_add_u32 v124, v{vONE}, 2, v{vT0}
v_lshl_add_u32 v124, v124, 7, v{vDUM}
v_and_b32 v{vT1}, 15, v{vLANE}
v_lshlrev_b32 v{vVO}, 4, v{vT1}
v_lshl_add_u32 v{vVO}, v{vONE}, 8, v{vVO}
v_add_u32 v{vVO}, 1024, v{vVO}
v_lshl_add_u32 v{vVS}, v{vVS}, 18, v{vVO}
v_mov_b64 {vr(vS1a,2)}, 0
v_mov_b64 {vr(vS2a,2)}, 0
s_mov_b32 s{sT3}, 0xffff0000
""")
    x_loads(1)
    if cfg.vtpos == 1: vtouch()
    stamp("setup")

    ESLOT = [3, 0, 1, 2]
    def u_parts(n, role=0):
        j, h = divmod(n, 2)
        return [f"""
s_mul_i32 s{sT2}, s{sPJ+j}, {128*3072}
s_add_u32 m0, s{sWR}, {(n & 3) * 24576}
s_add_u32 s{sT2}, s{sT2}, s{sCST}
""" + (f"s_add_u32 s{sT2}, s{sT2}, {64*3072}\n" if h else "") + f"buffer_load_dwordx4 v{vWO}, {srd(W)}, s{sT2} offen lds",
f"buffer_load_dwordx4 v{vWO}, {srd(W)}, s{sT2} offen offset:1024 lds",
f"buffer_load_dwordx4 v{vWO}, {srd(W)}, s{sT2} offen offset:2048 lds"]
    def e_parts(n):
        j, h = divmod(n, 2)
        out = []
        for bl in range(2):
            for q in range(3):
                pre = ""
                if q == 0 and bl == 0:
                    pre = f"s_mul_i32 s{sT2}, s{sPJ+j}, {128*2752}\ns_add_u32 m0, s{sWRD}, {ESLOT[n&3]*32768}\ns_add_u32 s{sT2}, s{sT2}, s{sDST}\n"
                    if h: pre += f"s_add_u32 s{sT2}, s{sT2}, {64*2752}\n"
                if q == 0 and bl == 1:
                    pre = f"s_add_u32 m0, s{sWRD}, {ESLOT[n&3]*32768+3072}\ns_add_u32 s{sT2}, s{sT2}, {8*2752}\n"
                out.append(pre + f"buffer_load_dwordx4 v{vW4+q}, {srd(TS)}, s{sT2} offen offset:{q*1024} lds")
        return out

    def unpack(n):
        for q in range(4):
            x = XRAW + n * 4 + q
            e(f"v_lshlrev_b32 v{XUN + (n*4+q)*2}, 16, v{x}")
            e(f"v_and_b32 v{XUN + (n*4+q)*2 + 1}, s{sT3}, v{x}")
    for n in range(8):
        if n == 4:
            for p in u_parts(0, 0): e(p); op(("u", 0))
            if cfg.vtpos == 3: vtouch()
        wait_tag(("x", n))
        for q in range(4):
            x = XRAW + n * 4 + q
            e(f"v_dot2c_f32_bf16 v{vS1a + (q&1)}, s{sONES}, v{x}")
            e(f"v_dot2c_f32_bf16 v{vS2a + (q&1)}, v{x}, v{x}")
        if n < cfg.lnsplit: unpack(n)
    if cfg.vtpos == 2: vtouch()
    if cfg.pt == 2: ptouch()
    stamp("LN1", 2)
    e(f"""
s_nop 2
v_add_f32 v{vS1a}, v{vS1a}, v{vS1b}
v_add_f32 v{vS2a}, v{vS2a}, v{vS2b}
s_nop 1
v_add_f32_dpp v{vS1a}, v{vS1a}, v{vS1a} quad_perm:[1,0,3,2] row_mask:0xf bank_mask:0xf
v_add_f32_dpp v{vS2a}, v{vS2a}, v{vS2a} quad_perm:[1,0,3,2] row_mask:0xf bank_mask:0xf
s_nop 1
v_add_f32_dpp v{vS1a}, v{vS1a}, v{vS1a} quad_perm:[2,3,0,1] row_mask:0xf bank_mask:0xf
v_add_f32_dpp v{vS2a}, v{vS2a}, v{vS2a} quad_perm:[2,3,0,1] row_mask:0xf bank_mask:0xf
s_nop 1
v_add_f32_dpp v{vS1a}, v{vS1a}, v{vS1a} row_half_mirror row_mask:0xf bank_mask:0xf
v_add_f32_dpp v{vS2a}, v{vS2a}, v{vS2a} row_half_mirror row_mask:0xf bank_mask:0xf
v_mul_f32 v{vNM}, {hex(f2u(-1.0/512))}, v{vS1a}
v_mul_f32 v{vS2a}, {hex(f2u(1.0/512))}, v{vS2a}
v_fma_f32 v{vS2a}, -v{vNM}, v{vNM}, v{vS2a}
v_max_f32 v{vS2a}, 0, v{vS2a}
v_add_f32 v{vS2a}, {hex(f2u(1e-5))}, v{vS2a}
v_rsq_f32 v{vRS}, v{vS2a}
s_waitcnt lgkmcnt(0)
v_mul_f32 v{vNM}, v{vNM}, v{vRS}
s_mul_i32 s{sTAG}, s{sTAG}, 0x9E3779B1
s_add_u32 s{sTAG}, s{sTAG}, 0x7F4A7C15
""")
    for n in range(8):
        if n >= cfg.lnsplit: unpack(n)
        for q in range(4):
            u = XUN + (n*4+q)*2
            e(f"v_pk_fma_f32 {vr(u,2)}, {vr(u,2)}, {vr(vRS,2)}, {vr(vNM,2)} op_sel_hi:[1,0,0]")
        for q in range(4):
            u = XUN + (n*4+q)*2
            e(f"v_cvt_pk_bf16_f32 v{XRAW+n*4+q}, v{u}, v{u+1}")
        if n < 4:
            e(f"ds_write_b128 v{vXW+1}, {vr(XRAW+n*4,4)} offset:{n*8192}")
        else:
            e(f"ds_write_b128 v{vXW}, {vr(XRAW+n*4,4)} offset:{(n-4)*8192}")
    stamp("LN2", 2)
    for p in u_parts(1, 0): e(p); op(("u", 1))
    if cfg.a2pre:
        for p in u_parts(2, 0): e(p); op(("u", 2))
    ops0 = list(st["ops"])

    def tiles(role): return [(1, ACC), (0, ACC2)] if role == 0 else [(2, ACC)]
    def tr_list(it, role):
        out = []
        for s in range(4):
            for q, (strip, acc) in enumerate(tiles(role)):
                b = WF + (it & 1) * 32 + (s * 2 + q) * 4
                a = vWT + ((it & 3) >> 1)
                o = (it & 1) * 24576 + s * 6144 + strip * 1024
                out.append([f"ds_read_b64_tr_b16 {vr(b,2)}, v{a} offset:{o}", f"ds_read_b64_tr_b16 {vr(b+2,2)}, v{a} offset:{o+512}"])
        return out
    def x_list(n):
        return [f"ds_read_b128 {vr(XF + n*16 + s*4, 4)}, v{vXA+s} offset:{(n&3)*8192}" for s in range(4)]
    def mf_list(n, role):
        out = []
        for s in range(4):
            for q, (strip, acc) in enumerate(tiles(role)):
                c = "0" if (n == 0 and s == 0) else vr(acc, 16)
                w, x = vr(WF+(n&1)*32+(s*2+q)*4,4), vr(XF+n*16+s*4,4)
                out.append(f"{MF} {vr(acc,16)}, {x}, {w}, {c}" if role == 1 else f"{MF} {vr(acc,16)}, {w}, {x}, {c}")
        return out
    def cvt_acc(dst, src):
        for j in range(8):
            e(f"v_cvt_pk_bf16_f32 v{dst+j}, v{src+2*j}, v{src+2*j+1}")
    def h_store(dst, src):
        cvt_acc(dst, src)
        for j in range(8):
            e(f"v_pk_max_i16 v{dst+j}, v{dst+j}, 0")
        e(f"""
buffer_store_dwordx4 {vr(dst,4)}, v{vL16}, {srd(H)}, s{sHST} offen sc1
buffer_store_dwordx4 {vr(dst+4,4)}, v{vL16}, {srd(H)}, s{sHST} offen offset:2048 sc1
""")
        op("hst", 2)
    vV4 = 248
    KB = 48
    def kv_base():
        e(f"s_add_u32 s{KB}, s{KD}, s{sKVO}\ns_addc_u32 s{KB+1}, s{KD+1}, 0")
    def kv_loads(b, wrap=True, mask=False):
        o = b * 2048 - 4096
        e(f"""
global_load_dwordx4 {vr(KV+b*12,4)}, v{vL16}, s[{KB}:{KB+1}] offset:{o} sc1
{f"s_mov_b64 exec, s[{sN}:{sN+1}]" if mask else ""}
global_load_dwordx4 {vr(KV+b*12+4,4)}, v{vV4+b*2}, s[{KB}:{KB+1}] offset:{o} sc1
global_load_dwordx4 {vr(KV+b*12+8,4)}, v{vV4+b*2+1}, s[{KB}:{KB+1}] offset:{o+512} sc1
{"s_mov_b64 exec, -1" if mask else ""}
""")
        if b == 3:
            e(f"s_add_u32 s{sKVO}, s{sKVO}, s{sSTR}\ns_and_b32 s{sKVO}, s{sKVO}, 0x3ffff")
            kv_base()
    def kv_publish():
        l = e.lab()
        e(f"""
v_mov_b32 v{vT1}, {L_FB + 8}
v_mov_b32 v{vT0}, 1
s_mov_b64 exec, 1
ds_add_rtn_u32 v{vT0}, v{vT1}, v{vT0}
s_waitcnt lgkmcnt(0)
v_cmp_eq_u32 vcc, 7, v{vT0}
s_mov_b64 exec, -1
s_cbranch_vccz {l}
""")
        flag_store(WS_KVF, sKVF)
        e(f"{l}:")
    def iteration(mfs, trs, xs, dq):
        n = len(trs)
        for s in range(n):
            if mfs: e(mfs[s])
            for l in xs[s * 4 // n:(s + 1) * 4 // n]: e(l)
            for l in trs[s]: e(l)
            for _ in range((len(dq) + n - s - 1) // (n - s) if n == 4 or s & 1 == 0 or len(dq) > 4 else 0):
                tag, p = dq.pop(0); e(p); op(tag)
        while dq:
            tag, p = dq.pop(0); e(p); op(tag)
    def epiA(role):
        if role == 0:
            l = e.lab()
            e(f"""
s_mov_b32 s{sT2}, {hex(f2u(0.25*math.log2(math.e)))}
s_add_u32 s{sT0}, s{sKVST}, 0x40000
s_lshl_b32 s{sT1}, s{sWV}, 10
v_add_u32 v{vT0}, s{sT1}, v{vL16}
v_mov_b32 v{vT1}, 0
v_lshrrev_b32 v{vDUM}, 2, v{vL16}
s_nop 5
""")
            for j in range(16):
                e(f"v_mul_f32 v{ACC+j}, s{sT2}, v{ACC+j}")
            cvt_acc(WF, ACC)
            e(f"""
buffer_store_dwordx4 {vr(WF,4)}, v{vL16}, {srd(WS)}, s{sKVST} offen sc1
buffer_store_dwordx4 {vr(WF+4,4)}, v{vL16}, {srd(WS)}, s{sT0} offen sc1
s_add_u32 s{sT0}, s{sQS}, 0x40000
""")
            cvt_acc(WF + 8, ACC2)
            e(f"""
buffer_store_dwordx4 {vr(WF+8,4)}, v{vL16}, {srd(WS)}, s{sQS} offen sc1
buffer_store_dwordx4 {vr(WF+12,4)}, v{vL16}, {srd(WS)}, s{sT0} offen sc1
s_bitcmp1_b32 s{sWV}, 0
s_cbranch_scc1 {l}
ds_write_b128 v{vT0}, {vr(WF,4)} offset:{L_KX}
ds_write_b128 v{vT0}, {vr(WF+4,4)} offset:{L_KX+1024}
ds_write_b32 v{vDUM}, v{vT1} offset:{L_FB}
{l}:
""")
        else:
            e("s_nop 11")
            cvt_acc(PK, ACC)
            e(f"""
buffer_store_dwordx4 {vr(PK,4)}, v{vVS}, {srd(WS)}, s{sKVST} offen sc1
buffer_store_dwordx4 {vr(PK+4,4)}, v{vVS}, {srd(WS)}, s{sKVST} offen offset:512 sc1
""")
        op("kvst", 2)
        stamp("epiA")
    PL = 241
    def rounds(role):
        st["ops"] = list(ops0)
        for it in range(8):
            wait_tag(("u", it))
            stamp(f"w{it}", 2)
            e("s_waitcnt lgkmcnt(0)\ns_barrier")
            stamp(f"b{it}", 1 if it == 0 else 2)
            U = lambda n: [(("u", n), p) for p in u_parts(n)]
            dq = (U(2) + U(3)) if it == 0 else (U(it + 3) if it + 3 < 8 else [])
            if role == 1 and 0 <= it - cfg.e0it < cfg.npre: dq = [(("e", it - cfg.e0it), p) for p in e_parts(it - cfg.e0it)]
            iteration(mf_list(it - 1, role) if it else None, tr_list(it, role), x_list(it), dq)
            if role == 1 and (cfg.ft1 == it + 1 or cfg.ft2 == it + 1): ftouch(cfg.ft2 == it + 1, cfg.ft1 == it + 1)
            if it == 3:
                for s in range(4):
                    e(f"v_subrev_u32 v{vXA+s}, {XHI}, v{vXA+s}")
            if it == 7:
                e("s_waitcnt lgkmcnt(0)")
                for m in mf_list(7, role): e(m)
                epiA(role)
                e("s_waitcnt lgkmcnt(0)\ns_barrier")
                stamp("b8")
            if it == cfg.supos and role == 1:
                e(f"""
v_mov_b64 {vr(PK+8,2)}, 0
v_mov_b64 {vr(PK+10,2)}, 0
s_mov_b64 exec, 1
v_mov_b32 v{PK+8}, s{sONES}
v_mov_b32 v{PK+9}, s{sONES}
v_mov_b32 v{PK+10}, s{sONES}
v_mov_b32 v{PK+11}, s{sONES}
s_and_b32 s{sT0}, s{sKVST}, 0xffffc000
s_lshl_b32 s{sT1}, s{sR}, 18
s_add_u32 s{sT0}, s{sT0}, s{sT1}
s_add_u32 s{sT0}, s{sT0}, 8192
s_mov_b64 exec, 0xff
buffer_store_dwordx4 {vr(PK+8,4)}, v{vL16}, {srd(WS)}, s{sT0} offen sc1
s_mov_b64 exec, -1
""")
                op("ones")
                for q in range(3):
                    e(f"""
v_add_u32 v{vT0}, {q*64}, v{vLANE}
v_mul_u32_u24 v{vT1}, 2731, v{vT0}
v_lshrrev_b32 v{vT1}, 16, v{vT1}
v_mul_u32_u24 v{vW4+q}, 24, v{vT1}
v_sub_u32 v{vT0}, v{vT0}, v{vW4+q}
v_mul_u32_u24 v{vW4+q}, 2752, v{vT1}
v_lshlrev_b32 v{vT1}, 1, v{vT1}
v_and_b32 v{vT1}, 4, v{vT1}
v_xor_b32 v{vT0}, v{vT0}, v{vT1}
v_lshl_add_u32 v{vW4+q}, v{vT0}, 4, v{vW4+q}
""")
                    if q: e(f"v_subrev_u32 v{vW4+q}, {q*1024}, v{vW4+q}")
            if it == cfg.supos and role == 0:
                e(f"""
s_and_b32 s{sT1}, s{sI}, 1
s_lshl_b32 s{sT1}, s{sT1}, 1
s_lshr_b32 s{sT0}, s{sU}, 1
s_add_u32 s{sOFL}, s{sT1}, s{sT0}
s_lshl_b32 s{sT0}, s{sG}, 2
s_add_u32 s{sT0}, s{sT0}, s{sOFL}
s_lshl_b32 s{sT0}, s{sT0}, 18
s_add_u32 s{sT0}, s{sT0}, {WS_KV + 4096}
s_add_u32 s{KD}, s{pWS}, s{sT0}
s_addc_u32 s{KD+1}, s{pWS+1}, 0
s_and_b32 s{sT0}, s{sI}, 24
s_lshl_b32 s{sKVO}, s{sT0}, 13
s_lshl_b32 s{sT0}, s{sR}, 14
s_add_u32 s{sKVO}, s{sKVO}, s{sT0}
s_add_u32 s{KB}, s{KD}, s{sKVO}
s_addc_u32 s{KB+1}, s{KD+1}, 0
s_mov_b32 s{sSTR}, 32768
s_lshr_b32 s{sT0}, s{sI}, 1
s_lshl_b32 s{sT0}, s{sT0}, 14
s_add_u32 s{sT0}, s{sT0}, 8192
s_add_u32 s{QB}, s{KD}, s{sT0}
s_addc_u32 s{QB+1}, s{KD+1}, 0
s_and_b32 s{sT0}, s{sKVST}, 0x3fff
s_lshr_b32 s{sT0}, s{sT0}, 1
s_and_b32 s{sQS}, s{sKVST}, 0xffffc000
s_add_u32 s{sQS}, s{sQS}, s{sT0}
s_add_u32 s{sQS}, s{sQS}, 12288
v_and_b32 v{vONE}, 27, v{vLANE}
v_cmp_ne_u32 vcc, 16, v{vONE}
s_mov_b32 s{sVMASK}, 0xffff0000
s_mov_b32 s{sVMASK+1}, 0xffff0000
v_cndmask_b32 v{vONE}, 0, 16, vcc
s_lshl_b32 s{sT0}, s{sR}, 11
v_add_u32 v{vWC}, s{sT0}, v{vL16}
v_xor_b32 v{vWC+1}, 2048, v{vWC}
s_lshl_b32 s{sT0}, s{sOFL}, 10
v_add_u32 v{vVS}, s{sT0}, v{vL16}
""")
            if it == cfg.supos and role == 1:
                e(f"""
s_mul_i32 s{sT0}, s{sI}, {H_BLK}
s_add_u32 s{sT0}, s{sT0}, {WS_H}
s_add_u32 s{H}, s{pWS}, s{sT0}
s_addc_u32 s{H+1}, s{pWS+1}, 0
s_mov_b32 s{H+2}, {H_BLK}
s_mov_b32 s{H+3}, 0x00020000
""")
    e(f"s_cmp_lg_u32 s{sROLE}, 0\ns_cbranch_scc1 L_fwave")
    rounds(0)
    e("s_setprio 2")
    for j in range(0, 64, 2):
        e(f"v_mov_b64 {vr(OO+j,2)}, 0")
    for q in range(8):
        o = (q >> 1) * 2048 - 4096 + (q & 1) * 512
        e(f"v_add_u32 v{vT0}, {4096 - o}, v{vONE}\nv_cndmask_b32 v{vV4+q}, v{vVO}, v{vT0}, s[{sVMASK}:{sVMASK+1}]")
    PL, PL2 = 12, 10
    sv = cfg.psleep; cfg.psleep = cfg.ksleep
    e(f"""
ds_read_b128 {vr(PP,4)}, v{vVS} offset:{L_KX}
v_mov_b64 {vr(KV+3*12+8,2)}, 0
v_mov_b64 {vr(KV+3*12+10,2)}, 0
v_and_b32 v{vDUM}, 7, v{vLANE}
v_lshlrev_b32 v{vDUM}, 7, v{vDUM}
s_and_b32 s{sHST}, s{sKVF}, 0xfffffc00
s_add_u32 s{sHST}, s{sHST}, {WS_KVF}
v_mov_b32 v{vWO+1}, {L_FB}
v_and_b32 v{vWO}, 31, v{vLANE}
v_lshlrev_b32 v{vWO}, 7, v{vWO}
""")
    e("s_waitcnt vmcnt(0)")
    kv_publish()
    stamp("kpub")
    l0, l1 = e.lab(), e.lab()
    e(f"s_cmp_lg_u32 s{sU}, 0\ns_cbranch_scc1 {l0}")
    lds_wait(8, 8, a=vWO+1)
    poll1(PL, vDUM, sHST, cfg.kdel)
    e(f"v_mov_b32 v{vT0}, 1\nds_write_b32 v{vWO+1}, v{vT0} offset:12\ns_branch {l1}\n{l0}:")
    lds_wait(12, 1, a=vWO+1)
    e(f"{l1}:")
    stamp("kvpoll")
    for t in range(4):
        e(f"global_load_dwordx4 {vr(QQ+t*4,4)}, v{vWC+(t>>1)}, s[{QB}:{QB+1}] offset:{(t&1)*1024} sc1")
    kv_loads(0); kv_loads(1); kv_loads(2)
    def maxtree(dst, S, init=None):
        if init is None:
            e(f"v_max3_f32 v{dst}, v{S}, v{S+1}, v{S+2}")
            e(f"v_max_f32 v{dst}, v{dst}, v{S+15}")
            rest = list(range(3, 15))
        else:
            rest = list(range(16))
        for j in range(0, len(rest), 2):
            e(f"v_max3_f32 v{dst}, v{dst}, v{S+rest[j]}, v{S+rest[j+1]}")
    def setc(ca, cb):
        e(f"""
v_mov_b32 v{ca}, v{vT0}
v_mov_b32 v{cb}, v{vT1}
s_nop 1
v_permlane32_swap_b32 v{ca}, v{vT0}
v_permlane32_swap_b32 v{cb}, v{vT1}
s_nop 1
v_max_f32 v{vT0}, v{vT0}, v{ca}
v_max_f32 v{vT1}, v{vT1}, v{cb}
v_sub_f32 v{ca}, 0, v{vT0}
v_sub_f32 v{ca+1}, 0, v{vT0}
v_sub_f32 v{cb}, 0, v{vT1}
v_sub_f32 v{cb+1}, 0, v{vT1}
""")
        for j in range(2, 16, 2):
            e(f"v_mov_b64 {vr(ca+j,2)}, {vr(ca,2)}")
        for j in range(2, 16, 2):
            e(f"v_mov_b64 {vr(cb+j,2)}, {vr(cb,2)}")
    e("s_waitcnt vmcnt(9)")
    for t in range(4):
        e(f"{MF} {vr(CC+t*16,16)}, {vr(PP,4)}, {vr(QQ+t*4,4)}, 0")
    e(f"v_mov_b64 {vr(PP+4,2)}, 0\nv_mov_b64 {vr(PP+6,2)}, 0\ns_nop 6")
    maxtree(vT0, CC); maxtree(vT1, CC + 16)
    setc(CC, CC + 16)
    e(f"s_waitcnt vmcnt(6)\n{MF} {vr(S0,16)}, {vr(KV,4)}, {vr(QQ,4)}, {vr(CC,16)}")
    maxtree(vT0, CC + 32); maxtree(vT1, CC + 48)
    setc(CC + 32, CC + 48)
    stamp("att0")
    V1 = lambda bb: vr(KV + bb*12 + 8, 4)
    e(f"""
buffer_load_dword v{PL2}, v{vWO}, {srd(WS)}, s{sRD} offen sc1
s_mov_b32 s{sCNT}, 0
s_call_b64 s[{RET}:{RET+1}], L_att
v_cmp_ne_u32 vcc, s{sTAG}, v{PL2}
s_cbranch_vccz L_kvall
""")
    poll1(PL2, vWO, sRD)
    cfg.psleep = sv
    e("L_kvall:")
    if cfg.stamps == 2:
        for q in range(6):
            stamp(f"m{q}", 2)
            e(f"s_mov_b32 s{sCNT}, 0\ns_call_b64 s[{RET}:{RET+1}], L_att")
        stamp("m6", 2)
    O0, O1, O2, O3 = OO, OO + 16, OO + 32, OO + 48
    e(f"""
s_mov_b32 s{sCNT}, {0 if cfg.stamps == 2 else 6}
s_call_b64 s[{RET}:{RET+1}], L_att
s_mul_i32 s{sT1}, s{sU}, 4608
{MF} {vr(O3,16)}, {V1(3)}, {vr(PP+4,4)}, {vr(O3,16)}
s_add_u32 s{sT1}, s{sT1}, {L_PARK}
v_add_u32 v{vT0}, s{sT1}, v{vL16}
v_lshl_add_u32 v{vT1}, v{vLANE}, 2, s{sT1}
s_lshl_b32 s{sT0}, s{sU}, 2
s_add_u32 s{sT0}, s{sT0}, {L_FB + 16}
v_mov_b32 v{vWC}, s{sT0}
v_mov_b32 v{vWC+1}, 1
ds_write_b32 v{vWC}, v{vWC+1} offset:16
ds_write_b128 v{vT0}, {vr(O2,4)}
ds_write_b128 v{vT0}, {vr(O2+4,4)} offset:1024
ds_write_b32 v{vT1}, v{O2+8} offset:2048
s_xor_b32 s{sT0}, s{sU}, 1
s_mul_i32 s{sT1}, s{sT0}, 4608
ds_write_b128 v{vT0}, {vr(O3,4)} offset:2304
ds_write_b128 v{vT0}, {vr(O3+4,4)} offset:{2304+1024}
ds_write_b32 v{vT1}, v{O3+8} offset:{2304+2048}
ds_write_b32 v{vWC}, v{vWC+1}
s_add_u32 s{sT1}, s{sT1}, {L_PARK}
v_add_u32 v{vWO}, s{sT1}, v{vL16}
v_lshl_add_u32 v{vT1}, v{vLANE}, 2, s{sT1}
v_xor_b32 v{vWC}, 4, v{vWC}
s_and_b32 s{sT0}, s{sI}, 30
s_add_u32 s{sT0}, s{sT0}, s{sR}
s_lshl_b32 s{sT1}, s{sG}, 2
s_add_u32 s{sT1}, s{sT1}, s{sOFL}
s_lshl_b32 s{sOK}, s{sT0}, 5
s_add_u32 s{sOK}, s{sOK}, s{sT1}
s_lshl_b32 s{sFLG}, s{sOK}, 7
s_lshl_b32 s{sOK}, s{sOK}, 11
s_add_u32 s{sOK}, s{sOK}, {WS_O}
s_mov_b32 s{sSPIN}, {cfg.spin * 8}
""")
    stamp("att1")
    lds_wait(0, 1, a=vWC)
    e(f"""
ds_read_b128 {vr(S0,4)}, v{vWO}
ds_read_b128 {vr(S0+4,4)}, v{vWO} offset:1024
ds_read_b32 v{S0+8}, v{vT1} offset:2048
ds_read_b128 {vr(S1,4)}, v{vWO} offset:2304
ds_read_b128 {vr(S1+4,4)}, v{vWO} offset:{2304+1024}
ds_read_b32 v{S1+8}, v{vT1} offset:{2304+2048}
s_waitcnt lgkmcnt(0)
""")
    stamp("mrg")
    for j in range(8):
        e(f"v_add_f32 v{O0+j}, v{O0+j}, v{S0+j}")
        e(f"v_add_f32 v{O1+j}, v{O1+j}, v{S1+j}")
    e(f"""
v_add_f32 v{O0+8}, v{O0+8}, v{S0+8}
v_add_f32 v{O1+8}, v{O1+8}, v{S1+8}
v_mov_b32 v{vT0}, {hex(f2u(2.0**90))}
v_cmp_nlt_f32 vcc, v{O0+8}, v{vT0}
v_cmp_nlt_f32 s[{sT2}:{sT2+1}], v{O1+8}, v{vT0}
s_or_b64 vcc, vcc, s[{sT2}:{sT2+1}]
""")
    e("s_branch L_slow" if cfg.force_slow else "s_cbranch_vccnz L_slow")
    e(f"""
L_norm:
v_rcp_f32 v{S0}, v{O0+8}
v_rcp_f32 v{S0+2}, v{O1+8}
s_nop 0
""")
    for j in range(8):
        e(f"v_mul_f32 v{O0+j}, v{O0+j}, v{S0}")
        e(f"v_mul_f32 v{O1+j}, v{O1+j}, v{S0+2}")
    for j in range(4):
        e(f"v_cvt_pk_bf16_f32 v{CC+j}, v{O0+2*j}, v{O0+2*j+1}")
    for j in range(4):
        e(f"v_cvt_pk_bf16_f32 v{CC+4+j}, v{O1+2*j}, v{O1+2*j+1}")
    e(f"""
buffer_store_dwordx4 {vr(CC,4)}, v{vL16}, {srd(WS)}, s{sOK} offen sc1
buffer_store_dwordx4 {vr(CC+4,4)}, v{vL16}, {srd(WS)}, s{sOK} offen offset:1024 sc1
v_lshrrev_b32 v{vT0}, 3, v0               ; row
v_and_b32 v{vT1}, 7, v0
v_lshlrev_b32 v10, 10, v{vT0}
v_lshl_add_u32 v10, v{vT1}, 4, v10
s_lshl_b32 s{sT0}, s{sI}, 16
s_lshl_b32 s{sT1}, s{sG}, 7
s_add_u32 s{sKVO}, s{sT0}, s{sT1}
s_add_u32 s{sKVST}, s{sKVO}, 32768
buffer_load_dwordx4 {vr(48,4)}, v10, {srd(X)}, s{sKVO} offen
buffer_load_dwordx4 {vr(52,4)}, v10, {srd(X)}, s{sKVST} offen
v_lshlrev_b32 v{vT1}, 1, v{vT1}
v_xor_b32 v{vT1}, v{vT1}, v{vT0}
v_and_b32 v{vT1}, 15, v{vT1}
v_lshlrev_b32 v120, 8, v{vT0}
v_lshl_add_u32 v120, v{vT1}, 4, v120
v_add_u32 v120, {L_REG}, v120
v_xor_b32 v121, 16, v120
v_add_u32 v122, 0x10000, v120
v_add_u32 v123, 0x10000, v121
v_mov_b32 v3, {L_FB}
s_mov_b32 s{OUT}, s{pOUT}
s_mov_b32 s{OUT+1}, s{pOUT+1}
s_mov_b32 s{OUT+2}, 0x200000
s_mov_b32 s{OUT+3}, 0x00020000
s_waitcnt vmcnt(2)
""")
    flag_store(WS_OF, sFLG)
    if cfg.owarm:
        e(f"""
buffer_load_dwordx4 {vr(64,4)}, v{vL16}, {srd(WS)}, s{sOK} offen sc1
buffer_load_dwordx4 {vr(68,4)}, v{vL16}, {srd(WS)}, s{sOK} offen offset:1024 sc1
""")
    e("s_setprio 0")
    stamp("pub")
    TM, GA, XU, XA, vOA = 128, 16, 32, 48, 10
    def read_parts(TM, base):
        for p in range(4):
            a0, a1 = (120, 121) if p < 2 else (122, 123)
            o = (p & 1) * 32768 + base
            e(f"ds_read_b128 {vr(TM+p*8,4)}, v{a0} offset:{o}")
            e(f"ds_read_b128 {vr(TM+p*8+4,4)}, v{a1} offset:{o}")
    def sum_parts(TM):
        for j in range(0, 8, 2):
            e(f"v_pk_add_f32 {vr(TM+j,2)}, {vr(TM+j,2)}, {vr(TM+8+j,2)}")
            e(f"v_pk_add_f32 {vr(TM+16+j,2)}, {vr(TM+16+j,2)}, {vr(TM+24+j,2)}")
        for j in range(0, 8, 2):
            e(f"v_pk_add_f32 {vr(TM+j,2)}, {vr(TM+j,2)}, {vr(TM+16+j,2)}")
    lds_wait(4, 4)
    read_parts(TM, 0)
    e("s_waitcnt lgkmcnt(4)")
    read_parts(TM + 32, 8192)
    e(f"s_waitcnt vmcnt({3 if cfg.owarm else 1})")
    for j in range(8):
        e(f"v_lshlrev_b32 v{XU+2*j}, 16, v{XA+j}")
        e(f"v_and_b32 v{XU+2*j+1}, 0xffff0000, v{XA+j}")
    e("s_waitcnt lgkmcnt(8)")
    sum_parts(TM)
    e("s_waitcnt lgkmcnt(0)")
    sum_parts(TM + 32)
    src = lambda j: TM + (j >> 3) * 32 + (j & 7)
    for j in range(16):
        e(f"v_mul_f32 v{GA+j}, {hex(f2u(-math.log2(math.e)))}, v{src(j)}")
    for j in range(16):
        e(f"v_exp_f32 v{GA+j}, v{GA+j}")
    e("s_nop 0")
    for j in range(16):
        e(f"v_add_f32 v{GA+j}, 1.0, v{GA+j}")
    for j in range(16):
        e(f"v_rcp_f32 v{GA+j}, v{GA+j}")
    e("s_nop 0")
    for j in range(0, 16, 2):
        e(f"v_pk_mul_f32 {vr(GA+j,2)}, {vr(GA+j,2)}, {vr(src(j),2)}")
    stamp("gate")
    e("s_barrier")
    stamp("B1")
    read_parts(TM, 16384)
    e("s_waitcnt lgkmcnt(4)")
    read_parts(TM + 32, 16384 + 8192)
    for h in range(2):
        e(f"s_waitcnt lgkmcnt({8 if h == 0 else 0})")
        sum_parts(TM + h*32)
        for j in range(0, 8, 2):
            e(f"v_pk_fma_f32 {vr(TM+h*32+j,2)}, {vr(TM+h*32+j,2)}, {vr(GA+h*8+j,2)}, {vr(XU+h*8+j,2)}")
        for j in range(4):
            e(f"v_cvt_pk_bf16_f32 v{XA+h*4+j}, v{TM+h*32+2*j}, v{TM+h*32+2*j+1}")
        e(f"buffer_store_dwordx4 {vr(XA+h*4,4)}, v{vOA}, {srd(OUT)}, s{sKVO if h == 0 else sKVST} offen {['', 'sc1', 'nt', 'sc0 sc1'][cfg.ost]}")
    e(f"""
s_or_b32 s{sT1}, s2, s{sU}
s_cmp_lg_u32 s{sT1}, 0
s_cbranch_scc1 L_fin
""")
    flag_store(WS_EPOCH, sT1)
    e("s_branch L_fin")

    e("L_fwave:")
    rounds(1)
    vFB, vW2O, vW2T, vL4, vPB = 3, 4, 6, 8, 9
    e(f"""
v_mov_b32 v{vFB}, {L_FB}
v_sub_u32 v{vDUM}, 1, v{vLANE}
v_max_i32 v{vDUM}, 0, v{vDUM}
s_lshl_b32 s{sREG}, s{sU}, 15
s_add_u32 s{sREG}, s{sREG}, {L_REG}
v_mov_b32 v{vW2O}, v{vWP}
v_add_u32 v{vW2O+1}, {8192-1024}, v{vWP}
v_add_u32 v{vW2T}, s{sREG}, v124
v_xor_b32 v{vW2T+1}, 64, v{vW2T}
v_and_b32 v{vL4}, 31, v{vLANE}
v_lshlrev_b32 v{vL4}, 7, v{vL4}
""")
    wait_tag("kvst")
    kv_publish()
    stamp("kpub")
    if cfg.ft == 1 and cfg.ehold != 2: ftouch(True, False)
    if cfg.stouch:
        nw2, nwo, sh = (11, 4, 31) if cfg.stouch == 1 else (43, 16, 7)
        e(f"""
s_and_b32 s{sT0}, s{sI}, {sh}
s_lshl_b32 s{sT0}, s{sT0}, 2
s_add_u32 s{sT0}, s{sT0}, s{sU}
s_lshl_b32 s{sT2}, s{sG}, 7
s_mul_i32 s{sT1}, s{sT0}, {nw2*1024}
s_min_u32 s{sT1}, s{sT1}, {(1376-nw2)*1024}
s_add_u32 s{sT1}, s{sT1}, s{sT2}
s_add_u32 s88, s{pW2}, s{sT1}
s_addc_u32 s89, s{pW2+1}, 0
s_mul_i32 s{sT1}, s{sT0}, {nwo*1024}
s_add_u32 s{sT1}, s{sT1}, s{sT2}
s_add_u32 s100, s{pWO}, s{sT1}
s_addc_u32 s101, s{pWO+1}, 0
""")
        for k in range(nwo): e(f"s_load_dword s{pBX}, s[100:101], {k*1024}")
        for k in range(nw2): e(f"s_load_dword s{pBX}, s[88:89], {k*1024}")
    nfb = [0]
    def fbar():
        nfb[0] += 1
        if cfg.fbp: e("s_setprio 3")
        e(f"s_mov_b64 exec, 1\nds_add_u32 v{vFB}, v{vDUM}\ns_mov_b64 exec, -1")
        lds_wait(0, 4 * nfb[0])
        if cfg.fbp: e(f"s_setprio {cfg.pm}")
    e(f"s_setprio {cfg.pm}")
    ACCS = [16, 96, 80]
    WO = OUT
    e(f"""
s_mov_b32 s{W}, s{pW2}
s_mov_b32 s{W+1}, s{pW2+1}
s_mov_b32 s{W+2}, 0x158000
s_mov_b32 s{WO}, s{pWO}
s_mov_b32 s{WO+1}, s{pWO+1}
s_mov_b32 s{WO+2}, 0x80000
s_mov_b32 s{WO+3}, 0x00020000
s_lshl_b32 s{sT0}, s{sG}, 7
s_mul_i32 s{sSTART}, s{sU}, {352*1024}
s_add_u32 s{sSTART}, s{sSTART}, s{sT0}
s_lshl_b32 s{sCST}, s{sU}, 14
s_add_u32 s{sCST}, s{sCST}, s{sT0}
s_lshl_b32 s{sWR}, s{sU}, 11
s_mul_i32 s{sINC}, s{sU}, {22*2048}
""")
    def fill_parts(rho):
        out = []
        for sd, stride, lo in ((WO, 131072, 16384), (W, 352*1024, 0)):
            for h in range(2):
                out.append(f"""s_add_u32 m0, s{sWR}, {L_REG + rho*32768 + lo + h*8192}
s_add_u32 s{sT2}, s{sCST}, {rho*stride + h*65536}
buffer_load_dwordx4 v{vW2O}, {srd(sd)}, s{sT2} offen lds""")
                out.append(f"buffer_load_dwordx4 v{vW2O+1}, {srd(sd)}, s{sT2} offen offset:1024 lds")
        return out
    if cfg.e23 and not cfg.ehold:
        for m in (2, 3):
            for p in e_parts(m): e(p); op(("e", m))
    for n in range(8):
        wait_tag(("e", n))
        stamp(f"ew{n}", 3)
        fbar()
        stamp(f"ef{n}", 3)
        def rd(s):
            for t in range(3):
                b = WF + (s * 3 + t) * 4
                a = vWB + (ESLOT[n&3] >> 1)
                o = (ESLOT[n&3] & 1) * 32768 + s * 6144 + t * 128
                e(f"ds_read_b64_tr_b16 {vr(b,2)}, v{a} offset:{o}")
                e(f"ds_read_b64_tr_b16 {vr(b+2,2)}, v{a} offset:{o+1536}")
        if (cfg.ehold == 1 and n < 2) or (cfg.ehold == 2 and n < cfg.npre): dq = []
        elif n == 0: dq = [] if cfg.e23 else [(("e", m), p) for m in (2, 3) for p in e_parts(m)]
        elif n <= 4: dq = [(("e", n + 3), p) for p in e_parts(n + 3)]
        else: dq = [("f", p) for p in fill_parts(ESLOT[(n - 1) & 3])]
        nq = len(dq)
        rd(0); rd(1)
        for s in range(4):
            if s + 2 < 4:
                e("s_waitcnt lgkmcnt(6)")
                rd(s + 2)
            e(f"s_waitcnt lgkmcnt({6 * min(2, 3 - s)})")
            for t in range(3):
                c = "0" if (n == 0 and s == 0) else vr(ACCS[t], 16)
                e(f"{MF} {vr(ACCS[t],16)}, {vr(WF+(s*3+t)*4,4)}, {vr(XF+n*16+s*4,4)}, {c}")
                idx = s * 3 + t
                while dq and (nq - len(dq)) * 12 <= idx * nq:
                    tag, p = dq.pop(0); e(p); op(tag)
        assert not dq
        if cfg.ehold == 2 and n == cfg.npre - 1:
            lds_wait(cfg.hw, 1 if cfg.hw == 12 else 8)
            if cfg.edel: e(f"s_sleep {cfg.edel}")
            for m in range(cfg.npre, cfg.npre + 3):
                for p in e_parts(m): e(p); op(("e", m))
            if cfg.ft == 1: ftouch(True, False)
        if cfg.ehold == 1 and n == 1:
            lds_wait(12, 1)
            e(f"s_sleep {cfg.edel}")
            if cfg.ft == 9: ftouch(True, False)
            for m in (2, 3, 4):
                for p in e_parts(m): e(p); op(("e", m))
        stamp(f"em{n}", 3)
    e(f"s_setprio {cfg.pv}\ns_nop 10")
    for t in range(3):
        h_store(WF + 8*t, ACCS[t])
        e(f"s_add_u32 s{sHST}, s{sHST}, 8192")
    e(f"s_setprio {cfg.pm}")
    stamp("ffn1")
    fbar()
    G, W2F, HF, NWIN, WOF = 16, 80, 104, 11, 192
    def dma2(sd, sbase, k, slot, tag):
        e(f"""
s_add_u32 m0, s{sREG}, {slot * 2048}
s_add_u32 s{sT0}, s{sbase}, {k*16*1024}
buffer_load_dwordx4 v{vW2O}, {srd(sd)}, s{sT0} offen lds
buffer_load_dwordx4 v{vW2O+1}, {srd(sd)}, s{sT0} offen offset:1024 lds
""")
        op(tag, 2)
    def h_issue(k):
        hb = HF + (k % NWIN) * 8
        e(f"""
s_add_u32 s{sT0}, s{sINC}, {k*2048}
buffer_load_dwordx4 {vr(hb,4)}, v{vL16}, {srd(H)}, s{sT0} offen sc1
buffer_load_dwordx4 {vr(hb+4,4)}, v{vL16}, {srd(H)}, s{sT0} offen offset:1024 sc1
""")
        op(("h", k), 2)
    def f2_reads(k):
        slot = (k % 16) * 2048
        b = W2F + (k % 3) * 8
        for ch in range(2):
            e(f"ds_read_b64_tr_b16 {vr(b+ch*4,2)}, v{vW2T+ch} offset:{slot}")
            e(f"ds_read_b64_tr_b16 {vr(b+ch*4+2,2)}, v{vW2T+ch} offset:{slot+1024}")
    wait_tag("hst")
    flag_store(WS_HF, sFLG)
    stamp("hpub", 3)
    for q, p in enumerate(fill_parts(ESLOT[3])):
        e(p)
        if q & 1: e(f"s_waitcnt vmcnt({cfg.pace})")
    e("s_waitcnt vmcnt(0)")
    fbar()
    stamp("w8", 3)
    for s_ in range(8):
        for ch in range(2):
            b = WOF + (s_ * 2 + ch) * 4
            e(f"ds_read_b64_tr_b16 {vr(b,2)}, v{vW2T+ch} offset:{16384 + s_*2048}")
            e(f"ds_read_b64_tr_b16 {vr(b+2,2)}, v{vW2T+ch} offset:{16384 + s_*2048 + 1024}")
        e("s_waitcnt lgkmcnt(8)")
    e("s_waitcnt lgkmcnt(0)")
    stamp("wr", 3)
    for k in range(8, 16):
        dma2(W, sSTART, k, k, "w")
        e(f"s_waitcnt vmcnt({cfg.pace})")
    e(f"s_lshl_b32 s{sRD}, s{sI}, 12\ns_add_u32 s{sRD}, s{sRD}, {WS_HF}")
    stamp("w16", 3)
    poll1(W2F, vL4, sRD)
    stamp("hpoll")
    e(f"s_setprio {cfg.pm2}")
    st["ops"] = []
    NK = 22
    nh = 0
    def h_upto(n):
        nonlocal nh
        while nh < min(n, NK):
            h_issue(nh); nh += 1
    h_upto(cfg.hlead)
    f2_reads(0); f2_reads(1)
    for k in range(NK):
        if k == cfg.early:
            for n in range(nh + 1, k + NWIN + 1):
                h_upto(n); e(f"s_waitcnt vmcnt({cfg.pace})")
            e(f"""
s_lshl_b32 s{sOK}, s{sI}, 16
s_lshl_b32 s{sT1}, s{sU}, 14
s_add_u32 s{sOK}, s{sOK}, s{sT1}
s_add_u32 s{sOK}, s{sOK}, {WS_O}
s_and_b32 s{sT2}, s{sG}, {1 if cfg.orot else 0}
s_lshl_b32 s{sT1}, s{sT2}, 10
s_add_u32 s{sOK}, s{sOK}, s{sT1}
s_lshl_b32 s{sDST}, s{sT2}, 13
s_lshl_b32 s{sRD}, s{sI}, 12
s_lshl_b32 s{sT1}, s{sU}, 10
s_add_u32 s{sRD}, s{sRD}, s{sT1}
s_add_u32 s{sRD}, s{sRD}, {WS_OF}
v_and_b32 v{vL4}, 0x380, v{vL4}
v_and_b32 v{vT0}, 31, v{vLANE}
v_lshrrev_b32 v{vT1}, 5, v{vLANE}
v_xor_b32 v{vT1}, v{vT1}, v{vLANE}
v_and_b32 v{vT1}, 15, v{vT1}
v_lshlrev_b32 v{vPB}, 8, v{vT0}
v_lshl_add_u32 v{vPB}, v{vT1}, 4, v{vPB}
v_add_u32 v{vPB}, s{sREG}, v{vPB}
s_lshl_b32 s{sT0}, s{sU}, 2
v_add_u32 v10, s{sT0}, v{vFB}
""")
            stamp("fe")
            lds_wait(32, 1, a=10, sl=4)
            e("s_setprio 1")
        h_upto(k + cfg.hlead + 1 if k < cfg.early else k + NWIN)
        if 1 <= k <= 6:
            dma2(W, sSTART, k + 15, k - 1, ("w", k + 15))
        if k + 2 < NK:
            wait_tag(("w", k + 2))
            f2_reads(k + 2)
        wait_tag(("h", k))
        e(f"s_waitcnt lgkmcnt({4 * min(2, NK - 1 - k)})")
        b = W2F + (k % 3) * 8
        hb = HF + (k % NWIN) * 8
        for r in range(2):
            for ch in range(2):
                g = G + (r * 2 + ch) * 16
                c = "0" if k == 0 else vr(g, 16)
                e(f"{MF} {vr(g,16)}, {vr(b+ch*4,4)}, {vr(hb+r*4,4)}, {c}")
    stamp("f22")
    AD = 80
    e("s_setprio 3")
    e(f"buffer_load_dword v{vONE}, v{vL4}, {srd(WS)}, s{sRD} offen sc1" if cfg.opre else f"v_mov_b32 v{vONE}, 0")
    for q in range(8):
        e(f"v_xor_b32 v{AD+q}, {q << 5}, v{vPB}")
    e("s_nop 1")
    for q in range(8):
        for r in range(2):
            e(f"ds_write_b128 v{AD+q}, {vr(G+r*32+q*4,4)} offset:{r*8192}")
    for q in range(8):
        e(f"v_add_u32 v{AD+q}, s{sDST}, v{AD+q}")
    l = e.lab()
    e(f"""
s_waitcnt lgkmcnt(0)
s_mov_b64 exec, 1
ds_add_u32 v{vFB}, v{vDUM} offset:4
s_mov_b64 exec, -1
s_waitcnt vmcnt(0)
{f"v_cmp_ne_u32 vcc, s{sTAG}, v{vONE}" if cfg.opre else ""}
{f"s_cbranch_vccz {l}" if cfg.opre else ""}
""")
    poll1(vONE, vL4, sRD, cfg.osl)
    e(f"{l}:")
    stamp("opoll")
    OF, SA = 128, 16
    for h in range(2):
        e(f"s_mov_b32 s{sT0}, s{sOK}" if h == 0 else f"s_xor_b32 s{sT0}, s{sOK}, 1024")
        for s_ in range(8):
            if s_ and s_ % 2 == 0:
                e(f"s_add_u32 s{sT0}, s{sT0}, 4096")
            e(f"buffer_load_dwordx4 {vr(OF+(h*8+s_)*4,4)}, v{vL16}, {srd(WS)}, s{sT0} offen offset:{(s_&1)*2048} sc1")
    for h in range(2):
        for s_ in range(8):
            e(f"s_waitcnt vmcnt({15 - h*8 - s_})")
            for ch in range(2):
                a = SA + h*32 + ch*16
                c = "0" if s_ == 0 else vr(a, 16)
                e(f"{MF} {vr(a,16)}, {vr(WOF+(s_*2+ch)*4,4)}, {vr(OF+(h*8+s_)*4,4)}, {c}")
            if h == 1 and s_ >= 4:
                for q in (2*(s_-4), 2*(s_-4)+1):
                    e(f"ds_write_b128 v{AD+q}, {vr(SA+q*4,4)} offset:16384")
    for q in range(8):
        e(f"v_xor_b32 v{AD+q}, 0x2000, v{AD+q}")
    e("s_nop 1")
    for q in range(8):
        e(f"ds_write_b128 v{AD+q}, {vr(SA+32+q*4,4)} offset:16384")
    e("s_waitcnt lgkmcnt(0)")
    stamp("omf")
    e("s_barrier")
    e("L_fin:")
    if cfg.stamps:
        e("s_waitcnt vmcnt(0)")
        stamp("end")
        e(f"""
s_memrealtime s[88:89]
s_waitcnt lgkmcnt(0)
v_writelane_b32 v15, s86, 62
v_writelane_b32 v15, s88, 63
s_lshl_b32 s{sT0}, s2, 3
s_add_u32 s{sT0}, s{sT0}, s{sWV}
s_lshl_b32 s{sT0}, s{sT0}, 8
s_add_u32 s{sT0}, s{sT0}, 0x8000000
v_lshlrev_b32 v{vT0}, 2, v{vLANE}
buffer_store_dword v15, v{vT0}, {srd(WS)}, s{sT0} offen
""")
    e("L_exit:\ns_endpgm")

    e(".p2align 6\nL_att:")
    def ex(S, a, b):
        for j in range(a, b):
            e(f"v_exp_f32 v{S+j}, v{S+j}" if not (cfg.xp & 8 and j & 1) else "s_nop 1")
    def cv(S, a, b):
        for j in range(a, b):
            e(f"v_cvt_pk_bf16_f32 v{PP+j}, v{S+2*j}, v{S+2*j+1}")
    K = lambda bb: vr(KV + bb*12, 4)
    V0 = lambda bb: vr(KV + bb*12 + 4, 4)
    for s in range(4):
        b = s; pb = (s - 1) % 4; nb = (s + 1) % 4
        for t in range(4):
            S, Sn = (S0, S1) if t % 2 == 0 else (S1, S0)
            op_, vprev = (OO + 48, V1(pb)) if t == 0 else (OO + (t-1)*16, V1(b))
            tn = (t + 1) % 4
            ex(S, 0, 4)
            e(f"{MF} {vr(op_,16)}, {vprev}, {vr(PP+4,4)}, {vr(op_,16)}")
            if t == 0: kv_loads(pb)
            if t == 1 and s == 3: e(f"s_sub_u32 s{sCNT}, s{sCNT}, 1")
            ex(S, 4, 8)
            cv(S, 0, 4)
            if t == 3: e("s_waitcnt vmcnt(6)")
            e(f"{MF} {vr(Sn,16)}, {K(nb) if t == 3 else K(b)}, {vr(QQ+tn*4,4)}, {vr(CC+tn*16,16)}")
            ex(S, 8, 12)
            e(f"{MF} {vr(OO+t*16,16)}, {V0(b)}, {vr(PP,4)}, {vr(OO+t*16,16)}")
            ex(S, 12, 16)
            cv(S, 4, 8)
    e(f"s_cbranch_scc0 L_att\ns_setpc_b64 s[{RET}:{RET+1}]")

    e(f"""
L_slow:
s_waitcnt vmcnt(0)
s_mov_b32 s{sKVO}, 0
s_mov_b32 s{sCNT}, 64
v_mov_b32 v{vT0}, 0xff800000
v_mov_b32 v{vT1}, 0xff800000
L_slow_loop:
s_add_u32 s{KB}, s{KD}, s{sKVO}
s_addc_u32 s{KB+1}, s{KD+1}, 0
global_load_dwordx4 {vr(KV,4)}, v{vL16}, s[{KB}:{KB+1}] offset:-4096 sc1
s_add_u32 s{sKVO}, s{sKVO}, 2048
s_and_b32 s{sT0}, s{sKVO}, 8192
s_add_u32 s{sKVO}, s{sKVO}, s{sT0}
s_waitcnt vmcnt(0)
{MF} {vr(S0,16)}, {vr(KV,4)}, {vr(QQ,4)}, 0
{MF} {vr(S1,16)}, {vr(KV,4)}, {vr(QQ+4,4)}, 0
s_nop 15
s_nop 3
""")
    maxtree(vT0, S0, init=True)
    maxtree(vT1, S1, init=True)
    e(f"""
s_sub_u32 s{sCNT}, s{sCNT}, 1
s_cmp_lg_u32 s{sCNT}, 0
s_cbranch_scc1 L_slow_loop
s_mov_b32 s{sKVO}, 0
s_mov_b64 s[{KB}:{KB+1}], s[{KD}:{KD+1}]
s_mov_b32 s{sSTR}, 16384
s_mov_b32 s{sCNT}, 15
""")
    for j in range(4):
        e(f"v_mov_b32 v{KV+3*12+8+j}, 0\nv_mov_b32 v{PP+4+j}, 0")
    for b in range(3):
        kv_loads(b)
    for j in range(0, 32, 2):
        e(f"v_mov_b64 {vr(OO+j,2)}, 0")
    setc(CC, CC + 16)
    e(f"""
s_waitcnt vmcnt(6)
{MF} {vr(S0,16)}, {vr(KV,4)}, {vr(QQ,4)}, {vr(CC,16)}
s_nop 11
s_call_b64 s[{RET}:{RET+1}], L_att
s_nop 15
s_branch L_norm
L_codeend:
""")

    hdr = f"""; Fused kernel: LayerNorm -> QKV / FFN GEMMs -> attention -> out projection + gate (one launch, 256 workgroups).
; Kernarg: A_x, A_wqkv, A_wo, B_x (unused), B_w1, B_w2, out, debug, ws (8 bytes each).
{"; stamps=" + ("RT," if cfg.rt else "") + ",".join(names) if names else ";"}
; @launch grid=(256,1,1) block=(512,1,1) lds=163840
.amdgcn_target "amdgcn-amd-amdhsa--gfx950"
.text
.globl {cfg.kname}
.p2align 8
.type {cfg.kname},@function
{cfg.kname}:
"""
    ftr = f""".section .rodata,"a"
.p2align 6
.amdhsa_kernel {cfg.kname}
  .amdhsa_next_free_vgpr 256
  .amdhsa_next_free_sgpr 102
  .amdhsa_accum_offset 256
  .amdhsa_group_segment_fixed_size 0
  .amdhsa_kernarg_size 72
  .amdhsa_user_sgpr_count 2
  .amdhsa_user_sgpr_kernarg_segment_ptr 1
  .amdhsa_system_sgpr_workgroup_id_x 1
.end_amdhsa_kernel
"""
    return hdr + e.text() + ftr

if __name__ == "__main__":
    cfg = Cfg()
    out = f"cdna_kernels/{NAME}.s"
    for a in sys.argv[1:]:
        k, v = a.split("=")
        if k == "out":
            out = v
        else:
            assert hasattr(cfg, k), k
            setattr(cfg, k, int(v))
    open(out, "w").write(gen(cfg))
    print("wrote", out)
```

```python
import sys, struct, math

NAME = "recurrent_scan__softmax_full_mha__dense_activation_relu__prompt"

def f2u(x):
    return struct.unpack("<I", struct.pack("<f", x))[0]

class Cfg:
    stamps = 0
    rt = 0
    kname = NAME + "_kernel"
    force_slow = 0
    spin = 200000
    ctouch = 1
    lnsplit = 4
    nolagA = 1
    kvrot = 1
    orot = 1
    fl = 32
    qpub = 12
    epace = 3
    U = 1
    kdel = 18
    ehold = 2
    hw = 12
    e0it = 5
    npre = 3
    supF = 3
    ut = 0
    u0pos = 4
    g7 = 0
    pf = 0
    sf = 0
    opre = 0
    osl = 0
    dlate = 1
    dbg_pad = 0
    dbg_at = 0
    xmap = 0
    qsplit = 4
    a2pre = 0
    supos = 0
    ost = 1
    fastpro = 1
    xp = 0
    ft = 1
    ft1 = 4
    epre = 1
    nopre = 0
    edel = 0
    owarm = 0
    w2 = 0
    ldpos = 0
    pt = 0
    vm = 0
    pshift = 21
    kvx = 0
    frot = 0
    e23 = 1
    fbp = 1
    pm2 = 0
    ksleep = 4
    NB = 4
    early = 6
    ft2 = 0
    stouch = 0
    vt = 0
    vtpos = 2
    pace = 2
    dpace = 4
    hlead = 3
    ddelay = 1
    mearly = 0
    dearly = 1
    pm = 0
    pv = 0
    psleep = 4

WS_EPOCH = 0x0
WS_KVF = 0x8000
WS_HF = 0x20000
WS_OF = 0x40000
WS_KV = 0x100000
WS_H = 0x900000
H_BLK = 86 * 2048
WS_O = 0xF00000
WS_SIZE = 0x1100000

L_QX = 0
L_KX = 8192
L_FB = 12288
L_REG = 32768
XHI = L_REG + 3 * 32768

class E:
    def __init__(self):
        self.L = []
        self.nlab = 0
    def __call__(self, s):
        for line in s.strip("\n").split("\n"):
            line = line.rstrip()
            if not line.strip():
                continue
            if line.strip().endswith(":") and " " not in line.strip():
                self.L.append(line.strip())
            else:
                self.L.append("    " + line.strip())
    def lab(self, p="L"):
        self.nlab += 1
        return f"{p}_{self.nlab}"
    def text(self):
        return "\n".join(self.L) + "\n"

def vr(a, n):
    return f"v[{a}:{a+n-1}]"
MF = "v_mfma_f32_32x32x16_bf16"

def gen(cfg):
    e = E()
    NB = cfg.NB
    names = []
    def stamp(name, lvl=1):
        if cfg.stamps and (lvl == 1 or cfg.stamps == lvl):
            name = str(name)
            if name not in names: names.append(name)
            e("s_memrealtime s[84:85]\ns_waitcnt lgkmcnt(0)" if cfg.rt else "s_memtime s[84:85]\ns_waitcnt lgkmcnt(0)\ns_sub_u32 s84, s84, s82")
            e(f"v_writelane_b32 v15, s84, {names.index(name)}")
    X, W, WS, H, OUT = 4, 8, 12, 16, 20
    sWV, sI, sG, sROT, sTAG, sFLG = 24, 25, 26, 27, 28, 29
    sRD, sWR, sR, sSTART, sINC, sKVF = 30, 31, 32, 33, 34, 35
    sCST, sDST, sOK, sWRD = 36, 37, 38, 39
    sOFL = 44
    sN, sP0, sTH, sW2B, sHB2, sWX = 40, 41, 42, 43, 45, 47
    sONES = 46
    sVMASK = 50
    sT0, sT1, sT2, sT3 = 52, 53, 54, 55
    sKVST, sHST, sROLE, sCNT, sKVO, sREG = 56, 57, 58, 59, 60, 61
    sSPIN, sU = 62, 63
    pX, pWQKV, pWO, pBX, pW1, pW2, pOUT, pDBG, pWS = 64, 66, 68, 70, 72, 74, 76, 78, 80
    sPJ = 90
    RET = 94
    TS = 96
    KD = H
    srd = lambda b: f"s[{b}:{b+3}]"
    vLANE, vL16, vVO, vWO, vWC, vWT, vVS, vDUM, vONE, vT0, vT1 = 1, 2, 3, 4, 6, 8, 10, 11, 12, 13, 14
    vS1a, vS1b, vS2a, vS2b, vRS, vNM, vXW, vWROW, vXO = 16, 17, 18, 19, 20, 22, 24, 26, 27
    ACC, WF, ACC2 = 16, 32, 96
    PK = 96
    vXA, vW4, vWB, vWP = 112, 116, 120, 127
    XF = 128
    XRAW, XUN = 128, 160
    QQ, PP = 16, 240
    S0, S1, CC, OO = 32, 48, 64, 128
    KV = 192
    sSTR, sQS, QB = 42, 43, 40
    L_PARK = 13312

    st = {"ops": []}
    def op(tag, n=1): st["ops"].extend([tag] * n)
    def wait_tag(tag):
        ops = st["ops"]
        idx = [i for i, t in enumerate(ops) if t == tag]
        if idx:
            e(f"s_waitcnt vmcnt({len(ops) - 1 - max(idx)})")
    def flag_store(base, soff):
        e(f"""
v_mov_b32 v{vT0}, s{sTAG}
v_lshrrev_b32 v{vT1}, 2, v{vL16}
v_add_u32 v{vT1}, {base}, v{vT1}
s_mov_b32 exec_lo, {hex((1 << cfg.fl) - 1)}
s_mov_b32 exec_hi, 0
buffer_store_dword v{vT0}, v{vT1}, {srd(WS)}, s{soff} offen {['sc1', 'sc0 sc1'][cfg.sf]}
s_mov_b64 exec, -1
""")
    def poll1(vdst, vaddr, soff, first=0):
        lp, lpd = e.lab("LP"), e.lab("LPD")
        e(f"""
s_mov_b32 s{sSPIN}, {cfg.spin}
{lp}:
{f"s_sleep {first}" if first else ""}
buffer_load_dword v{vdst}, v{vaddr}, {srd(WS)}, s{soff} offen {['sc1', 'sc0 sc1', 'sc1 nt', 'sc0 sc1 nt'][cfg.pf]}
s_waitcnt vmcnt(0)
v_cmp_ne_u32 vcc, s{sTAG}, v{vdst}
s_cbranch_vccz {lpd}
{f's_sleep {cfg.psleep}' if cfg.psleep and not first else ''}
s_sub_u32 s{sSPIN}, s{sSPIN}, 1
s_cbranch_scc0 {lp}
{lpd}:
""")

    def lds_wait(off, n, a=3, sl=1):
        lp, lpd = e.lab("LW"), e.lab("LWD")
        e(f"""
s_mov_b32 s{sSPIN}, {cfg.spin * 8}
{lp}:
ds_read_b32 v{vT0}, v{a} offset:{off}
s_waitcnt lgkmcnt(0)
v_cmp_le_u32 vcc, {n}, v{vT0}
s_cbranch_vccnz {lpd}
s_sleep {sl}
s_sub_u32 s{sSPIN}, s{sSPIN}, 1
s_cbranch_scc0 {lp}
{lpd}:
""")
    e(f"""
s_load_dwordx2 s[{X}:{X+1}], s[0:1], 0
s_cmp_ge_u32 s2, 256
s_cbranch_scc1 L_exit
s_setprio 3
s_load_dwordx16 s[64:79], s[0:1], 0
s_load_dwordx2 s[80:81], s[0:1], 64
""")
    if cfg.stamps:
        e("s_memtime s[82:83]\ns_memrealtime s[86:87]\nv_mov_b32 v15, 0")
    e(f"""
s_lshl_b32 s{sT2}, s2, {[3, 4, 2][cfg.xmap]}
s_and_b32 s{sT2}, s{sT2}, {[24, 16, 28][cfg.xmap]}
s_bfe_u32 s{sT3}, s2, {['0x30003', '0x40003', '0x20003'][cfg.xmap]}
s_or_b32 s{sI}, s{sT2}, s{sT3}
s_and_b32 s{sT2}, s2, {[4, 6, 0][cfg.xmap]}
s_lshr_b32 s{sT3}, s2, {[6, 7, 5][cfg.xmap]}
s_or_b32 s{sG}, s{sT2}, s{sT3}
s_add_u32 s{sROT}, s{sI}, s{sG}
s_and_b32 s{sPJ}, s{sROT}, 3
s_add_u32 s{sROT}, s{sROT}, 1
s_and_b32 s{sPJ+1}, s{sROT}, 3
v_lshrrev_b32 v{vT0}, 3, v0
v_and_b32 v{vT1}, 7, v0
v_lshlrev_b32 v{vXO}, 4, v{vT1}
v_lshl_add_u32 v{vXO}, v{vT0}, 10, v{vXO}
s_lshl_b32 s{sT0}, s{sI}, 16
v_add_u32 v{vXO}, s{sT0}, v{vXO}
s_mov_b32 s{X+2}, 0x200000
s_mov_b32 s{X+3}, 0x00020000
s_waitcnt lgkmcnt(0)
""")
    def x_loads(half):
        for j in range(2*half, 2*half+2):
            e(f"s_lshl_b32 s{sT2}, s{sPJ+j}, 8")
            e(f"buffer_load_dwordx4 {vr(XRAW+j*8,4)}, v{vXO}, {srd(X)}, s{sT2} offen")
            e(f"buffer_load_dwordx4 {vr(XRAW+j*8+4,4)}, v{vXO}, {srd(X)}, s{sT2} offen offset:128")
            op(("x", 2*j)); op(("x", 2*j+1))
        e(f"s_setprio {2 - 2*half}")
    def vtouch():
        if not cfg.vt: return
        e(f"""
s_lshl_b32 s3, s2, 3
s_add_u32 s3, s3, s{sWV}
s_mul_i32 s{sT2}, s3, 768
v_lshl_add_u32 v30, v{vLANE}, 7, s{sT2}
v_min_u32 v31, {0x158000 - 4}, v30
s_lshl_b32 s3, s3, 8
v_lshl_add_u32 v28, v{vLANE}, 7, s3
s_mov_b64 exec, 63
""")
        if cfg.vt & 2:
            e(f"global_load_dword v29, v30, s[{pWQKV}:{pWQKV+1}]\nglobal_load_dword v29, v31, s[{pW1}:{pW1+1}]"); op("t", 2)
        if cfg.vt & 1:
            e(f"global_load_dword v29, v31, s[{pW2}:{pW2+1}]\ns_mov_b64 exec, 3\nglobal_load_dword v29, v28, s[{pWO}:{pWO+1}]"); op("t", 2)
        e("s_mov_b64 exec, -1")
    def ftouch(w2, w1):
        e(f"""
s_lshl_b32 s3, s2, 2
s_add_u32 s3, s3, s{sU}
s_mul_i32 s{sT0}, s3, 1408
v_lshl_add_u32 v125, v{vLANE}, 7, s{sT0}
v_min_u32 v125, {0x158000 - 4}, v125
s_mov_b64 exec, 0x7ff
""")
        if w1:
            e(f"global_load_dword v126, v125, s[{pW1}:{pW1+1}]"); op("t")
        if w2:
            e(f"""
global_load_dword v126, v125, s[{pW2}:{pW2+1}]
s_lshl_b32 s3, s3, 9
v_lshl_add_u32 v125, v{vLANE}, 7, s3
s_mov_b64 exec, 15
global_load_dword v126, v125, s[{pWO}:{pWO+1}]
"""); op("t", 2)
        e("s_mov_b64 exec, -1")
    def ptouch():
        e(f"""
v_lshlrev_b32 v28, {cfg.pshift}, v{vLANE}
v_add_u32 v28, 0x3000, v28
v_min_u32 v28, {WS_SIZE - 4}, v28
s_lshl_b32 s3, s2, 13
v_mov_b32 v30, s3
s_mov_b64 exec, {hex((1 << min(64, (WS_SIZE >> cfg.pshift) + 1)) - 1) if (WS_SIZE >> cfg.pshift) + 1 < 31 else -1}
global_load_dword v29, v28, s[{pWS}:{pWS+1}] sc1
s_mov_b64 exec, 1
global_load_dword v29, v30, s[{pOUT}:{pOUT+1}] sc1
s_mov_b64 exec, -1
""")
        op("t", 2)
    x_loads(0)
    e(f"""
s_load_dword s{sTAG}, s[{pWS}:{pWS+1}], {WS_EPOCH}
s_getpc_b64 s[88:89]
L_pc:
s_bfe_u32 s3, s2, 0x30003
s_mul_i32 s3, s3, 3
v_lshrrev_b32 v30, 6, v0
v_mul_u32_u24 v28, 24, v30
v_and_b32 v29, 3, v0
v_add3_u32 v28, v28, v29, s3
v_lshlrev_b32 v28, 7, v28
v_min_u32 v28, L_codeend-L_pc-4, v28
s_mov_b64 exec, 7
global_load_dword v29, v28, s[88:89]
s_mov_b64 exec, -1
v_readfirstlane_b32 s{sWV}, v30
v_and_b32 v{vLANE}, 63, v0
v_lshlrev_b32 v{vL16}, 4, v{vLANE}
s_xor_b32 s{sPJ+2}, s{sPJ}, 2
s_xor_b32 s{sPJ+3}, s{sPJ+1}, 2
""")
    op("ct")
    if cfg.pt == 1: ptouch()
    if cfg.vtpos == 0: vtouch()
    e(f"""
s_mov_b32 s{W}, s{pWQKV}
s_mov_b32 s{W+1}, s{pWQKV+1}
s_mov_b32 s{W+2}, 0x180000
s_mov_b32 s{W+3}, 0x00020000
v_bfe_u32 v{vXW}, v0, 4, 3
v_xor_b32 v{vXW}, v{vXW}, v{vT1}
v_lshlrev_b32 v{vXW}, 4, v{vXW}
v_lshl_add_u32 v{vXW}, v{vT0}, 7, v{vXW}
v_add_u32 v{vXW+1}, {XHI}, v{vXW}
v_lshrrev_b32 v{vWROW}, 3, v{vLANE}
v_bfe_u32 v{vT0}, v{vLANE}, 4, 1
v_lshlrev_b32 v{vT0}, 2, v{vT0}
v_xor_b32 v{vWP}, v{vT1}, v{vT0}
v_lshlrev_b32 v{vWP}, 4, v{vWP}
v_mul_u32_u24 v{vWO}, 3072, v{vWROW}
v_add_u32 v{vWO}, v{vWO}, v{vWP}
v_add_u32 v{vWO+1}, {8*3072-1024}, v{vWO}
v_lshl_add_u32 v{vWP}, v{vWROW}, 10, v{vWP}
s_lshr_b32 s{sROLE}, s{sWV}, 2
s_and_b32 s{sU}, s{sWV}, 3
s_and_b32 s{sR}, s{sWV}, 1
s_mul_i32 s{sSTART}, s{sU}, {16*3072}
s_lshl_b32 s{sT2}, s{sG}, 7
s_add_u32 s{sSTART}, s{sSTART}, s{sT2}
s_mul_i32 s{sT3}, s{sT2}, 3
s_mul_i32 s{sDST}, s{sU}, {16*2752}
s_add_u32 s{sDST}, s{sDST}, s{sT3}
s_mul_i32 s{sCST}, s{sWV}, {8*3072}
s_add_u32 s{sCST}, s{sCST}, s{sT2}
s_mov_b32 s{TS}, s{pW1}
s_mov_b32 s{TS+1}, s{pW1+1}
s_mov_b32 s{TS+2}, 0x158000
s_mov_b32 s{TS+3}, 0x00020000
s_mul_i32 s{sWR}, s{sWV}, 3072
s_add_u32 s{sWR}, s{sWR}, {L_REG}
s_mul_i32 s{sWRD}, s{sU}, 6144
s_add_u32 s{sWRD}, s{sWRD}, {L_REG}
s_lshl_b32 s{sINC}, s{sROLE}, 10
s_add_u32 s{sINC}, s{sINC}, s{sSTART}
s_add_u32 s{sINC}, s{sINC}, 1024
s_mov_b32 s{sONES}, 0x3f803f80
s_mov_b32 s{WS}, s{pWS}
s_mov_b32 s{WS+1}, s{pWS+1}
s_mov_b32 s{WS+2}, {0x10000000 if cfg.stamps else WS_SIZE}
s_mov_b32 s{WS+3}, 0x00020000
s_bfe_u32 s{sT1}, s{sWV}, 0x10001         ; ct
s_lshl_b32 s{sT3}, s{sG}, 1
s_add_u32 s{sT3}, s{sT3}, s{sT1}
s_lshl_b32 s{sKVST}, s{sT3}, 19
s_lshr_b32 s{sT3}, s{sI}, 1
s_lshl_b32 s{sT3}, s{sT3}, 2
s_and_b32 s{sT0}, s{sI}, 1
s_add_u32 s{sT3}, s{sT3}, s{sT0}
s_lshl_b32 s{sT3}, s{sT3}, 1
s_add_u32 s{sT3}, s{sT3}, s{sR}
s_lshl_b32 s{sT3}, s{sT3}, 11
s_add_u32 s{sKVST}, s{sKVST}, s{sT3}
s_add_u32 s{sKVST}, s{sKVST}, {WS_KV}
s_mul_i32 s{sT3}, s{sG}, 6
s_add_u32 s{sT3}, s{sT3}, s{sT1}
s_lshl_b32 s{sHST}, s{sT3}, 12
s_lshl_b32 s{sT3}, s{sR}, 10
s_add_u32 s{sHST}, s{sHST}, s{sT3}
s_lshl_b32 s{sRD}, s{sG}, 12
s_lshl_b32 s{sT3}, s{sI}, 7
s_add_u32 s{sKVF}, s{sRD}, s{sT3}
s_add_u32 s{sRD}, s{sRD}, {WS_KVF}
s_lshl_b32 s{sT0}, s{sI}, 12
s_lshl_b32 s{sT3}, s{sU}, 7
s_add_u32 s{sT0}, s{sT0}, s{sT3}
s_lshl_b32 s{sT3}, s{sG}, 9
s_add_u32 s{sFLG}, s{sT0}, s{sT3}
v_and_b32 v{vT0}, 31, v{vLANE}
v_bfe_u32 v{vT1}, v{vLANE}, 1, 3
v_lshrrev_b32 v{vONE}, 5, v{vLANE}        ; hh
v_xor_b32 v{vXA}, v{vONE}, v{vT1}
v_lshlrev_b32 v{vXA}, 4, v{vXA}
v_lshl_add_u32 v{vXA}, v{vT0}, 7, v{vXA}
s_lshl_b32 s{sT3}, s{sR}, 12
s_add_u32 s{sT3}, s{sT3}, {XHI}
v_add_u32 v{vXA}, s{sT3}, v{vXA}
v_xor_b32 v{vXA+1}, 32, v{vXA}
v_xor_b32 v{vXA+2}, 64, v{vXA}
v_xor_b32 v{vXA+3}, 0x60, v{vXA}
v_bfe_u32 v{vVS}, v{vLANE}, 4, 1
v_and_b32 v{vT1}, 3, v{vLANE}
v_lshlrev_b32 v{vWB+1}, 3, v{vT1}
v_lshl_add_u32 v{vWB+1}, v{vVS}, 5, v{vWB+1}
v_bfe_u32 v{vT0}, v{vLANE}, 3, 1
v_lshl_add_u32 v{vDUM}, v{vT0}, 6, v{vWB+1}    ; + (rr>>1)*64
v_bfe_u32 v{vT0}, v{vLANE}, 2, 2          ; rr
v_lshl_add_u32 v{vWB}, v{vONE}, 3, v{vT0}      ; 8hh+rr
v_lshl_add_u32 v{vWT}, v{vT0}, 7, v{vDUM}
s_lshl_b32 s{sT3}, s{sT1}, 6
v_xor_b32 v{vWT}, s{sT3}, v{vWT}
v_mul_u32_u24 v{vWT+1}, 3072, v{vONE}
v_add_u32 v{vWT}, v{vWT}, v{vWT+1}
v_add_u32 v{vWT}, {L_REG}, v{vWT}
v_add_u32 v{vWT+1}, 49152, v{vWT}
v_mul_u32_u24 v{vWB}, 384, v{vWB}
s_lshl_b32 s{sT3}, s{sT1}, 6
v_xor_b32 v{vWB+1}, s{sT3}, v{vDUM}
v_add_u32 v{vWB}, v{vWB}, v{vWB+1}
v_add_u32 v{vWB}, {L_REG}, v{vWB}
v_add_u32 v{vWB+1}, 0x10000, v{vWB}
v_lshl_add_u32 v124, v{vONE}, 2, v{vT0}
v_lshl_add_u32 v124, v124, 7, v{vDUM}
v_and_b32 v{vT1}, 15, v{vLANE}
v_lshlrev_b32 v{vVO}, 4, v{vT1}
v_lshl_add_u32 v{vVO}, v{vONE}, 8, v{vVO}
v_add_u32 v{vVO}, 1024, v{vVO}
v_lshl_add_u32 v{vVS}, v{vVS}, 18, v{vVO}
v_mov_b64 {vr(vS1a,2)}, 0
v_mov_b64 {vr(vS2a,2)}, 0
s_mov_b32 s{sT3}, 0xffff0000
""")
    x_loads(1)
    if cfg.vtpos == 1: vtouch()
    stamp("setup")

    ESLOT = [3, 0, 1, 2]
    def u_parts(n, role=0):
        j, h = divmod(n, 2)
        return [f"""
s_mul_i32 s{sT2}, s{sPJ+j}, {128*3072}
s_add_u32 m0, s{sWR}, {(n & 3) * 24576}
s_add_u32 s{sT2}, s{sT2}, s{sCST}
""" + (f"s_add_u32 s{sT2}, s{sT2}, {64*3072}\n" if h else "") + f"buffer_load_dwordx4 v{vWO}, {srd(W)}, s{sT2} offen lds",
f"buffer_load_dwordx4 v{vWO}, {srd(W)}, s{sT2} offen offset:1024 lds",
f"buffer_load_dwordx4 v{vWO}, {srd(W)}, s{sT2} offen offset:2048 lds"]
    def e_parts(n):
        j, h = divmod(n, 2)
        out = []
        for bl in range(2):
            for q in range(3):
                pre = ""
                if q == 0 and bl == 0:
                    pre = f"s_mul_i32 s{sT2}, s{sPJ+j}, {128*2752}\ns_add_u32 m0, s{sWRD}, {ESLOT[n&3]*32768}\ns_add_u32 s{sT2}, s{sT2}, s{sDST}\n"
                    if h: pre += f"s_add_u32 s{sT2}, s{sT2}, {64*2752}\n"
                if q == 0 and bl == 1:
                    pre = f"s_add_u32 m0, s{sWRD}, {ESLOT[n&3]*32768+3072}\ns_add_u32 s{sT2}, s{sT2}, {8*2752}\n"
                out.append(pre + f"buffer_load_dwordx4 v{vW4+q}, {srd(TS)}, s{sT2} offen offset:{q*1024} lds")
        return out

    def unpack(n):
        for q in range(4):
            x = XRAW + n * 4 + q
            e(f"v_lshlrev_b32 v{XUN + (n*4+q)*2}, 16, v{x}")
            e(f"v_and_b32 v{XUN + (n*4+q)*2 + 1}, s{sT3}, v{x}")
    for n in range(8):
        if n == cfg.u0pos:
            for p in u_parts(0, 0): e(p); op(("u", 0))
            if cfg.ut:
                e(f"""
v_lshlrev_b32 v28, 10, v{vLANE}
s_add_u32 s{sT2}, s{sT2}, {64*3072}
s_mov_b64 exec, 0xffffff
buffer_load_dword v29, v28, {srd(W)}, s{sT2} offen
s_mov_b64 exec, -1
""")
                op("t")
            if cfg.vtpos == 3: vtouch()
        wait_tag(("x", n))
        for q in range(4):
            x = XRAW + n * 4 + q
            e(f"v_dot2c_f32_bf16 v{vS1a + (q&1)}, s{sONES}, v{x}")
            e(f"v_dot2c_f32_bf16 v{vS2a + (q&1)}, v{x}, v{x}")
        if n < cfg.lnsplit: unpack(n)
    if cfg.vtpos == 2: vtouch()
    if cfg.pt == 2: ptouch()
    stamp("LN1", 2)
    e(f"""
s_nop 2
v_add_f32 v{vS1a}, v{vS1a}, v{vS1b}
v_add_f32 v{vS2a}, v{vS2a}, v{vS2b}
s_nop 1
v_add_f32_dpp v{vS1a}, v{vS1a}, v{vS1a} quad_perm:[1,0,3,2] row_mask:0xf bank_mask:0xf
v_add_f32_dpp v{vS2a}, v{vS2a}, v{vS2a} quad_perm:[1,0,3,2] row_mask:0xf bank_mask:0xf
s_nop 1
v_add_f32_dpp v{vS1a}, v{vS1a}, v{vS1a} quad_perm:[2,3,0,1] row_mask:0xf bank_mask:0xf
v_add_f32_dpp v{vS2a}, v{vS2a}, v{vS2a} quad_perm:[2,3,0,1] row_mask:0xf bank_mask:0xf
s_nop 1
v_add_f32_dpp v{vS1a}, v{vS1a}, v{vS1a} row_half_mirror row_mask:0xf bank_mask:0xf
v_add_f32_dpp v{vS2a}, v{vS2a}, v{vS2a} row_half_mirror row_mask:0xf bank_mask:0xf
v_mul_f32 v{vNM}, {hex(f2u(-1.0/512))}, v{vS1a}
v_mul_f32 v{vS2a}, {hex(f2u(1.0/512))}, v{vS2a}
v_fma_f32 v{vS2a}, -v{vNM}, v{vNM}, v{vS2a}
v_max_f32 v{vS2a}, 0, v{vS2a}
v_add_f32 v{vS2a}, {hex(f2u(1e-5))}, v{vS2a}
v_rsq_f32 v{vRS}, v{vS2a}
s_waitcnt lgkmcnt(0)
v_mul_f32 v{vNM}, v{vNM}, v{vRS}
s_mul_i32 s{sTAG}, s{sTAG}, 0x9E3779B1
s_add_u32 s{sTAG}, s{sTAG}, 0x7F4A7C15
""")
    for n in range(8):
        if n >= cfg.lnsplit: unpack(n)
        for q in range(4):
            u = XUN + (n*4+q)*2
            e(f"v_pk_fma_f32 {vr(u,2)}, {vr(u,2)}, {vr(vRS,2)}, {vr(vNM,2)} op_sel_hi:[1,0,0]")
        for q in range(4):
            u = XUN + (n*4+q)*2
            e(f"v_cvt_pk_bf16_f32 v{XRAW+n*4+q}, v{u}, v{u+1}")
        if n < 4:
            e(f"ds_write_b128 v{vXW+1}, {vr(XRAW+n*4,4)} offset:{n*8192}")
        else:
            e(f"ds_write_b128 v{vXW}, {vr(XRAW+n*4,4)} offset:{(n-4)*8192}")
    stamp("LN2", 2)
    for p in u_parts(1, 0): e(p); op(("u", 1))
    if cfg.a2pre:
        for p in u_parts(2, 0): e(p); op(("u", 2))
    ops0 = list(st["ops"])

    def tiles(role): return [(1, ACC), (0, ACC2)] if role == 0 else [(2, ACC)]
    def tr_list(it, role):
        out = []
        for s in range(4):
            for q, (strip, acc) in enumerate(tiles(role)):
                b = WF + (it & 1) * 32 + (s * 2 + q) * 4
                a = vWT + ((it & 3) >> 1)
                o = (it & 1) * 24576 + s * 6144 + strip * 1024
                out.append([f"ds_read_b64_tr_b16 {vr(b,2)}, v{a} offset:{o}", f"ds_read_b64_tr_b16 {vr(b+2,2)}, v{a} offset:{o+512}"])
        return out
    def x_list(n):
        return [f"ds_read_b128 {vr(XF + n*16 + s*4, 4)}, v{vXA+s} offset:{(n&3)*8192}" for s in range(4)]
    def mf_list(n, role):
        out = []
        for s in range(4):
            for q, (strip, acc) in enumerate(tiles(role)):
                c = "0" if (n == 0 and s == 0) else vr(acc, 16)
                w, x = vr(WF+(n&1)*32+(s*2+q)*4,4), vr(XF+n*16+s*4,4)
                out.append(f"{MF} {vr(acc,16)}, {x}, {w}, {c}" if role == 1 else f"{MF} {vr(acc,16)}, {w}, {x}, {c}")
        return out
    def cvt_acc(dst, src):
        for j in range(8):
            e(f"v_cvt_pk_bf16_f32 v{dst+j}, v{src+2*j}, v{src+2*j+1}")
    def h_store(dst, src):
        cvt_acc(dst, src)
        for j in range(8):
            e(f"v_pk_max_i16 v{dst+j}, v{dst+j}, 0")
        e(f"""
buffer_store_dwordx4 {vr(dst,4)}, v{vL16}, {srd(H)}, s{sHST} offen sc1
buffer_store_dwordx4 {vr(dst+4,4)}, v{vL16}, {srd(H)}, s{sHST} offen offset:2048 sc1
""")
        op("hst", 2)
    vV4 = 248
    KB = 48
    def kv_base():
        e(f"s_add_u32 s{KB}, s{KD}, s{sKVO}\ns_addc_u32 s{KB+1}, s{KD+1}, 0")
    def kv_loads(b, wrap=True, mask=False):
        o = b * 2048 - 4096
        e(f"""
global_load_dwordx4 {vr(KV+b*12,4)}, v{vL16}, s[{KB}:{KB+1}] offset:{o} sc1
{f"s_mov_b64 exec, s[{sN}:{sN+1}]" if mask else ""}
global_load_dwordx4 {vr(KV+b*12+4,4)}, v{vV4+b*2}, s[{KB}:{KB+1}] offset:{o} sc1
global_load_dwordx4 {vr(KV+b*12+8,4)}, v{vV4+b*2+1}, s[{KB}:{KB+1}] offset:{o+512} sc1
{"s_mov_b64 exec, -1" if mask else ""}
""")
        if b == 3:
            e(f"s_add_u32 s{sKVO}, s{sKVO}, s{sSTR}\ns_and_b32 s{sKVO}, s{sKVO}, 0x3ffff")
            kv_base()
    def kv_publish():
        l = e.lab()
        e(f"""
v_mov_b32 v{vT1}, {L_FB + 8}
v_mov_b32 v{vT0}, 1
s_mov_b64 exec, 1
ds_add_rtn_u32 v{vT0}, v{vT1}, v{vT0}
s_waitcnt lgkmcnt(0)
v_cmp_eq_u32 vcc, 7, v{vT0}
s_mov_b64 exec, -1
s_cbranch_vccz {l}
""")
        flag_store(WS_KVF, sKVF)
        e(f"{l}:")
    def iteration(mfs, trs, xs, dq):
        n = len(trs)
        for s in range(n):
            if mfs: e(mfs[s])
            for l in xs[s * 4 // n:(s + 1) * 4 // n]: e(l)
            for l in trs[s]: e(l)
            for _ in range((len(dq) + n - s - 1) // (n - s) if n == 4 or s & 1 == 0 or len(dq) > 4 else 0):
                tag, p = dq.pop(0); e(p); op(tag)
        while dq:
            tag, p = dq.pop(0); e(p); op(tag)
    def epiA(role):
        if role == 0:
            l = e.lab()
            e(f"""
s_and_b32 s{sT0}, s{sKVST}, 0x3fff
s_lshr_b32 s{sT0}, s{sT0}, 1
s_and_b32 s{sQS}, s{sKVST}, 0xffffc000
s_add_u32 s{sQS}, s{sQS}, s{sT0}
s_add_u32 s{sQS}, s{sQS}, 12288
s_mov_b32 s{sT2}, {hex(f2u(0.25*math.log2(math.e)))}
s_add_u32 s{sT0}, s{sKVST}, 0x40000
s_lshl_b32 s{sT1}, s{sWV}, 10
v_add_u32 v{vT0}, s{sT1}, v{vL16}
v_mov_b32 v{vT1}, 0
v_lshrrev_b32 v{vDUM}, 2, v{vL16}
s_nop 0
""")
            for j in range(16):
                e(f"v_mul_f32 v{ACC+j}, s{sT2}, v{ACC+j}")
            cvt_acc(WF, ACC)
            e(f"""
buffer_store_dwordx4 {vr(WF,4)}, v{vL16}, {srd(WS)}, s{sKVST} offen sc1
buffer_store_dwordx4 {vr(WF+4,4)}, v{vL16}, {srd(WS)}, s{sT0} offen sc1
s_add_u32 s{sT0}, s{sQS}, 0x40000
""")
            cvt_acc(WF + 8, ACC2)
            e(f"""
buffer_store_dwordx4 {vr(WF+8,4)}, v{vL16}, {srd(WS)}, s{sQS} offen sc1
buffer_store_dwordx4 {vr(WF+12,4)}, v{vL16}, {srd(WS)}, s{sT0} offen sc1
s_bitcmp1_b32 s{sWV}, 0
s_cbranch_scc1 {l}
ds_write_b128 v{vT0}, {vr(WF,4)} offset:{L_KX}
ds_write_b128 v{vT0}, {vr(WF+4,4)} offset:{L_KX+1024}
ds_write_b32 v{vDUM}, v{vT1} offset:{L_FB}
{l}:
""")
        else:
            e("s_nop 11")
            cvt_acc(PK, ACC)
            e(f"""
buffer_store_dwordx4 {vr(PK,4)}, v{vVS}, {srd(WS)}, s{sKVST} offen sc1
buffer_store_dwordx4 {vr(PK+4,4)}, v{vVS}, {srd(WS)}, s{sKVST} offen offset:512 sc1
""")
        op("kvst", 2)
        stamp("epiA")
    PL = 241
    def rounds(role):
        st["ops"] = list(ops0)
        for it in range(8):
            wait_tag(("u", it))
            stamp(f"w{it}", 2)
            e("s_waitcnt lgkmcnt(0)\ns_barrier")
            stamp(f"b{it}", 1 if it == 0 else 2)
            U = lambda n: [(("u", n), p) for p in u_parts(n)]
            dq = (U(2) + U(3)) if it == 0 else (U(it + 3) if it + 3 < 8 else [])
            if role == 1 and 0 <= it - cfg.e0it < cfg.npre: dq = [(("e", it - cfg.e0it), p) for p in e_parts(it - cfg.e0it)]
            iteration(mf_list(it - 1, role) if it else None, tr_list(it, role), x_list(it), dq)
            if role == 1 and (cfg.ft1 == it + 1 or cfg.ft2 == it + 1): ftouch(cfg.ft2 == it + 1, cfg.ft1 == it + 1)
            if it == 3:
                for s in range(4):
                    e(f"v_subrev_u32 v{vXA+s}, {XHI}, v{vXA+s}")
            if it == 7:
                e("s_waitcnt lgkmcnt(0)")
                for m in mf_list(7, role): e(m)
                epiA(role)
                e("s_waitcnt lgkmcnt(0)\ns_barrier")
                stamp("b8")
            if it == cfg.supF and role == 1:
                e(f"""
v_mov_b64 {vr(PK+8,2)}, 0
v_mov_b64 {vr(PK+10,2)}, 0
s_mov_b64 exec, 1
v_mov_b32 v{PK+8}, s{sONES}
v_mov_b32 v{PK+9}, s{sONES}
v_mov_b32 v{PK+10}, s{sONES}
v_mov_b32 v{PK+11}, s{sONES}
s_and_b32 s{sT0}, s{sKVST}, 0xffffc000
s_lshl_b32 s{sT1}, s{sR}, 18
s_add_u32 s{sT0}, s{sT0}, s{sT1}
s_add_u32 s{sT0}, s{sT0}, 8192
s_mov_b64 exec, 0xff
buffer_store_dwordx4 {vr(PK+8,4)}, v{vL16}, {srd(WS)}, s{sT0} offen sc1
s_mov_b64 exec, -1
""")
                op("ones")
                for q in range(3):
                    e(f"""
v_add_u32 v{vT0}, {q*64}, v{vLANE}
v_mul_u32_u24 v{vT1}, 2731, v{vT0}
v_lshrrev_b32 v{vT1}, 16, v{vT1}
v_mul_u32_u24 v{vW4+q}, 24, v{vT1}
v_sub_u32 v{vT0}, v{vT0}, v{vW4+q}
v_mul_u32_u24 v{vW4+q}, 2752, v{vT1}
v_lshlrev_b32 v{vT1}, 1, v{vT1}
v_and_b32 v{vT1}, 4, v{vT1}
v_xor_b32 v{vT0}, v{vT0}, v{vT1}
v_lshl_add_u32 v{vW4+q}, v{vT0}, 4, v{vW4+q}
""")
                    if q: e(f"v_subrev_u32 v{vW4+q}, {q*1024}, v{vW4+q}")
            if it == cfg.supF and role == 1:
                e(f"""
s_mul_i32 s{sT0}, s{sI}, {H_BLK}
s_add_u32 s{sT0}, s{sT0}, {WS_H}
s_add_u32 s{H}, s{pWS}, s{sT0}
s_addc_u32 s{H+1}, s{pWS+1}, 0
s_mov_b32 s{H+2}, {H_BLK}
s_mov_b32 s{H+3}, 0x00020000
""")
    e(f"s_cmp_lg_u32 s{sROLE}, 0\ns_cbranch_scc1 L_fwave")
    rounds(0)
    e("s_setprio 2")
    e(f"""
s_and_b32 s{sT1}, s{sI}, 1
s_lshl_b32 s{sT1}, s{sT1}, 1
s_lshr_b32 s{sT0}, s{sU}, 1
s_add_u32 s{sOFL}, s{sT1}, s{sT0}
s_lshl_b32 s{sT0}, s{sG}, 2
s_add_u32 s{sT0}, s{sT0}, s{sOFL}
s_lshl_b32 s{sT0}, s{sT0}, 18
s_add_u32 s{sT0}, s{sT0}, {WS_KV + 4096}
s_add_u32 s{KD}, s{pWS}, s{sT0}
s_addc_u32 s{KD+1}, s{pWS+1}, 0
s_and_b32 s{sT0}, s{sI}, 24
s_lshl_b32 s{sKVO}, s{sT0}, 13
s_lshl_b32 s{sT0}, s{sR}, 14
s_add_u32 s{sKVO}, s{sKVO}, s{sT0}
s_add_u32 s{KB}, s{KD}, s{sKVO}
s_addc_u32 s{KB+1}, s{KD+1}, 0
s_mov_b32 s{sSTR}, 32768
s_lshr_b32 s{sT0}, s{sI}, 1
s_lshl_b32 s{sT0}, s{sT0}, 14
s_add_u32 s{sT0}, s{sT0}, 8192
s_add_u32 s{QB}, s{KD}, s{sT0}
s_addc_u32 s{QB+1}, s{KD+1}, 0
v_and_b32 v{vONE}, 27, v{vLANE}
v_cmp_ne_u32 vcc, 16, v{vONE}
s_mov_b32 s{sVMASK}, 0xffff0000
s_mov_b32 s{sVMASK+1}, 0xffff0000
v_cndmask_b32 v{vONE}, 0, 16, vcc
s_lshl_b32 s{sT0}, s{sR}, 11
v_add_u32 v{vWC}, s{sT0}, v{vL16}
v_xor_b32 v{vWC+1}, 2048, v{vWC}
s_lshl_b32 s{sT0}, s{sOFL}, 10
v_add_u32 v{vVS}, s{sT0}, v{vL16}
""")
    for j in range(0, 64, 2):
        e(f"v_mov_b64 {vr(OO+j,2)}, 0")
    for q in range(8):
        o = (q >> 1) * 2048 - 4096 + (q & 1) * 512
        e(f"v_add_u32 v{vT0}, {4096 - o}, v{vONE}\nv_cndmask_b32 v{vV4+q}, v{vVO}, v{vT0}, s[{sVMASK}:{sVMASK+1}]")
    PL, PL2 = 12, 10
    sv = cfg.psleep; cfg.psleep = cfg.ksleep
    e(f"""
ds_read_b128 {vr(PP,4)}, v{vVS} offset:{L_KX}
v_mov_b64 {vr(KV+3*12+8,2)}, 0
v_mov_b64 {vr(KV+3*12+10,2)}, 0
v_and_b32 v{vDUM}, 7, v{vLANE}
v_lshlrev_b32 v{vDUM}, 7, v{vDUM}
s_and_b32 s{sHST}, s{sKVF}, 0xfffffc00
s_add_u32 s{sHST}, s{sHST}, {WS_KVF}
v_mov_b32 v{vWO+1}, {L_FB}
v_and_b32 v{vWO}, 31, v{vLANE}
v_lshlrev_b32 v{vWO}, 7, v{vWO}
""")
    e("s_waitcnt vmcnt(0)")
    kv_publish()
    stamp("kpub")
    l0, l1 = e.lab(), e.lab()
    e(f"s_cmp_lg_u32 s{sU}, 0\ns_cbranch_scc1 {l0}")
    lds_wait(8, 8, a=vWO+1)
    poll1(PL, vDUM, sHST, cfg.kdel)
    e(f"v_mov_b32 v{vT0}, 1\nds_write_b32 v{vWO+1}, v{vT0} offset:12\ns_branch {l1}\n{l0}:")
    lds_wait(12, 1, a=vWO+1)
    e(f"{l1}:")
    stamp("kvpoll")
    for t in range(4):
        e(f"global_load_dwordx4 {vr(QQ+t*4,4)}, v{vWC+(t>>1)}, s[{QB}:{QB+1}] offset:{(t&1)*1024} sc1")
    kv_loads(0); kv_loads(1); kv_loads(2)
    def maxtree(dst, S, init=None):
        if init is None:
            e(f"v_max3_f32 v{dst}, v{S}, v{S+1}, v{S+2}")
            e(f"v_max_f32 v{dst}, v{dst}, v{S+15}")
            rest = list(range(3, 15))
        else:
            rest = list(range(16))
        for j in range(0, len(rest), 2):
            e(f"v_max3_f32 v{dst}, v{dst}, v{S+rest[j]}, v{S+rest[j+1]}")
    def setc(ca, cb):
        e(f"""
v_mov_b32 v{ca}, v{vT0}
v_mov_b32 v{cb}, v{vT1}
s_nop 1
v_permlane32_swap_b32 v{ca}, v{vT0}
v_permlane32_swap_b32 v{cb}, v{vT1}
s_nop 1
v_max_f32 v{vT0}, v{vT0}, v{ca}
v_max_f32 v{vT1}, v{vT1}, v{cb}
v_sub_f32 v{ca}, 0, v{vT0}
v_sub_f32 v{ca+1}, 0, v{vT0}
v_sub_f32 v{cb}, 0, v{vT1}
v_sub_f32 v{cb+1}, 0, v{vT1}
""")
        for j in range(2, 16, 2):
            e(f"v_mov_b64 {vr(ca+j,2)}, {vr(ca,2)}")
        for j in range(2, 16, 2):
            e(f"v_mov_b64 {vr(cb+j,2)}, {vr(cb,2)}")
    e("s_waitcnt vmcnt(9)")
    for t in range(4):
        e(f"{MF} {vr(CC+t*16,16)}, {vr(PP,4)}, {vr(QQ+t*4,4)}, 0")
    e(f"v_mov_b64 {vr(PP+4,2)}, 0\nv_mov_b64 {vr(PP+6,2)}, 0\ns_nop 6")
    maxtree(vT0, CC); maxtree(vT1, CC + 16)
    setc(CC, CC + 16)
    e(f"s_waitcnt vmcnt(6)\n{MF} {vr(S0,16)}, {vr(KV,4)}, {vr(QQ,4)}, {vr(CC,16)}")
    maxtree(vT0, CC + 32); maxtree(vT1, CC + 48)
    setc(CC + 32, CC + 48)
    if cfg.vm: e(f"s_mov_b64 s[{sN}:{sN+1}], -1")
    e(f"s_waitcnt vmcnt(0)\nv_mov_b32 v252, 0x44444444\nv_bfe_u32 v248, v{vLANE}, 2, 2\nv_cmp_eq_u32 vcc, 0, v248\nv_mov_b32 v248, s{sONES}\ns_nop 0\nv_cndmask_b32 v248, 0, v248, vcc\nv_mov_b32 v249, v248\nv_mov_b32 v250, v248\nv_mov_b32 v251, v248")
    stamp("att0")
    V1 = lambda bb: vr(KV + bb*12 + 8, 4)
    e(f"""
buffer_load_dword v{PL2}, v{vWO}, {srd(WS)}, s{sRD} offen sc1
s_mov_b32 s{sCNT}, 0
s_call_b64 s[{RET}:{RET+1}], L_att
v_cmp_ne_u32 vcc, s{sTAG}, v{PL2}
s_cbranch_vccz L_kvall
""")
    poll1(PL2, vWO, sRD)
    cfg.psleep = sv
    e("L_kvall:")
    if cfg.vm: e(f"s_mov_b32 s{sN}, 0xffff\ns_mov_b32 s{sN+1}, 0xffff")
    if cfg.stamps == 2:
        for q in range(6):
            stamp(f"m{q}", 2)
            e(f"s_mov_b32 s{sCNT}, 0\ns_call_b64 s[{RET}:{RET+1}], L_att")
        stamp("m6", 2)
    O0, O1, O2, O3 = OO, OO + 16, OO + 32, OO + 48
    e(f"""
s_mov_b32 s{sCNT}, {0 if cfg.stamps == 2 else 6}
s_call_b64 s[{RET}:{RET+1}], L_att
s_mul_i32 s{sT1}, s{sU}, 4608
{MF} {vr(O3,16)}, {V1(3)}, {vr(PP+4,4)}, {vr(O3,16)}
s_add_u32 s{sT1}, s{sT1}, {L_PARK}
v_add_u32 v{vT0}, s{sT1}, v{vL16}
v_lshl_add_u32 v{vT1}, v{vLANE}, 2, s{sT1}
s_lshl_b32 s{sT0}, s{sU}, 2
s_add_u32 s{sT0}, s{sT0}, {L_FB + 16}
v_mov_b32 v{vWC}, s{sT0}
v_mov_b32 v{vWC+1}, 1
ds_write_b32 v{vWC}, v{vWC+1} offset:16
ds_write_b128 v{vT0}, {vr(O2,4)}
ds_write_b128 v{vT0}, {vr(O2+4,4)} offset:1024
ds_write_b32 v{vT1}, v{O2+8} offset:2048
s_xor_b32 s{sT0}, s{sU}, 1
s_mul_i32 s{sT1}, s{sT0}, 4608
ds_write_b128 v{vT0}, {vr(O3,4)} offset:2304
ds_write_b128 v{vT0}, {vr(O3+4,4)} offset:{2304+1024}
ds_write_b32 v{vT1}, v{O3+8} offset:{2304+2048}
ds_write_b32 v{vWC}, v{vWC+1}
s_add_u32 s{sT1}, s{sT1}, {L_PARK}
v_add_u32 v{vWO}, s{sT1}, v{vL16}
v_lshl_add_u32 v{vT1}, v{vLANE}, 2, s{sT1}
v_xor_b32 v{vWC}, 4, v{vWC}
s_and_b32 s{sT0}, s{sI}, 30
s_add_u32 s{sT0}, s{sT0}, s{sR}
s_lshl_b32 s{sT1}, s{sG}, 2
s_add_u32 s{sT1}, s{sT1}, s{sOFL}
s_lshl_b32 s{sOK}, s{sT0}, 5
s_add_u32 s{sOK}, s{sOK}, s{sT1}
s_lshl_b32 s{sFLG}, s{sOK}, 7
s_lshl_b32 s{sOK}, s{sOK}, 11
s_add_u32 s{sOK}, s{sOK}, {WS_O}
s_mov_b32 s{sSPIN}, {cfg.spin * 8}
""")
    stamp("att1")
    lds_wait(0, 1, a=vWC)
    e(f"""
ds_read_b128 {vr(S0,4)}, v{vWO}
ds_read_b128 {vr(S0+4,4)}, v{vWO} offset:1024
ds_read_b32 v{S0+8}, v{vT1} offset:2048
ds_read_b128 {vr(S1,4)}, v{vWO} offset:2304
ds_read_b128 {vr(S1+4,4)}, v{vWO} offset:{2304+1024}
ds_read_b32 v{S1+8}, v{vT1} offset:{2304+2048}
s_waitcnt lgkmcnt(0)
""")
    stamp("mrg")
    for j in range(8):
        e(f"v_add_f32 v{O0+j}, v{O0+j}, v{S0+j}")
        e(f"v_add_f32 v{O1+j}, v{O1+j}, v{S1+j}")
    e(f"""
v_add_f32 v{O0+8}, v{O0+8}, v{S0+8}
v_add_f32 v{O1+8}, v{O1+8}, v{S1+8}
v_mov_b32 v{vT0}, {hex(f2u(2.0**90))}
v_cmp_nlt_f32 vcc, v{O0+8}, v{vT0}
v_cmp_nlt_f32 s[{sT2}:{sT2+1}], v{O1+8}, v{vT0}
s_or_b64 vcc, vcc, s[{sT2}:{sT2+1}]
""")
    pass
    e(f"""
L_norm:
v_rcp_f32 v{S0}, v{O0+8}
v_rcp_f32 v{S0+2}, v{O1+8}
s_nop 0
""")
    for j in range(8):
        e(f"v_mul_f32 v{O0+j}, v{O0+j}, v{S0}")
        e(f"v_mul_f32 v{O1+j}, v{O1+j}, v{S0+2}")
    for j in range(4):
        e(f"v_cvt_pk_bf16_f32 v{CC+j}, v{O0+2*j}, v{O0+2*j+1}")
    for j in range(4):
        e(f"v_cvt_pk_bf16_f32 v{CC+4+j}, v{O1+2*j}, v{O1+2*j+1}")
    e(f"""
buffer_store_dwordx4 {vr(CC,4)}, v{vL16}, {srd(WS)}, s{sOK} offen sc1
buffer_store_dwordx4 {vr(CC+4,4)}, v{vL16}, {srd(WS)}, s{sOK} offen offset:1024 sc1
v_lshrrev_b32 v{vT0}, 3, v0               ; row
v_and_b32 v{vT1}, 7, v0
v_lshlrev_b32 v10, 10, v{vT0}
v_lshl_add_u32 v10, v{vT1}, 4, v10
s_lshl_b32 s{sT0}, s{sI}, 16
s_lshl_b32 s{sT1}, s{sG}, 7
s_add_u32 s{sKVO}, s{sT0}, s{sT1}
s_add_u32 s{sKVST}, s{sKVO}, 32768
buffer_load_dwordx4 {vr(48,4)}, v10, {srd(X)}, s{sKVO} offen
buffer_load_dwordx4 {vr(52,4)}, v10, {srd(X)}, s{sKVST} offen
v_lshlrev_b32 v{vT1}, 1, v{vT1}
v_xor_b32 v{vT1}, v{vT1}, v{vT0}
v_and_b32 v{vT1}, 15, v{vT1}
v_lshlrev_b32 v120, 8, v{vT0}
v_lshl_add_u32 v120, v{vT1}, 4, v120
v_add_u32 v120, {L_REG}, v120
v_xor_b32 v121, 16, v120
v_add_u32 v122, 0x10000, v120
v_add_u32 v123, 0x10000, v121
v_mov_b32 v3, {L_FB}
s_mov_b32 s{OUT}, s{pOUT}
s_mov_b32 s{OUT+1}, s{pOUT+1}
s_mov_b32 s{OUT+2}, 0x200000
s_mov_b32 s{OUT+3}, 0x00020000
s_waitcnt vmcnt(2)
""")
    flag_store(WS_OF, sFLG)
    if cfg.owarm:
        e(f"""
buffer_load_dwordx4 {vr(64,4)}, v{vL16}, {srd(WS)}, s{sOK} offen sc1
buffer_load_dwordx4 {vr(68,4)}, v{vL16}, {srd(WS)}, s{sOK} offen offset:1024 sc1
""")
    e("s_setprio 0")
    stamp("pub")
    TM, GA, XU, XA, vOA = 128, 16, 32, 48, 10
    def read_parts(TM, base):
        for p in range(4):
            a0, a1 = (120, 121) if p < 2 else (122, 123)
            o = (p & 1) * 32768 + base
            e(f"ds_read_b128 {vr(TM+p*8,4)}, v{a0} offset:{o}")
            e(f"ds_read_b128 {vr(TM+p*8+4,4)}, v{a1} offset:{o}")
    def sum_parts(TM):
        for j in range(0, 8, 2):
            e(f"v_pk_add_f32 {vr(TM+j,2)}, {vr(TM+j,2)}, {vr(TM+8+j,2)}")
            e(f"v_pk_add_f32 {vr(TM+16+j,2)}, {vr(TM+16+j,2)}, {vr(TM+24+j,2)}")
        for j in range(0, 8, 2):
            e(f"v_pk_add_f32 {vr(TM+j,2)}, {vr(TM+j,2)}, {vr(TM+16+j,2)}")
    lds_wait(4, 4)
    read_parts(TM, 0)
    e("s_waitcnt lgkmcnt(4)")
    read_parts(TM + 32, 8192)
    e(f"s_waitcnt vmcnt({3 if cfg.owarm else 1})")
    for j in range(8):
        e(f"v_lshlrev_b32 v{XU+2*j}, 16, v{XA+j}")
        e(f"v_and_b32 v{XU+2*j+1}, 0xffff0000, v{XA+j}")
    e("s_waitcnt lgkmcnt(8)")
    sum_parts(TM)
    e("s_waitcnt lgkmcnt(0)")
    sum_parts(TM + 32)
    src = lambda j: TM + (j >> 3) * 32 + (j & 7)
    for j in range(16):
        e(f"v_mul_f32 v{GA+j}, {hex(f2u(-math.log2(math.e)))}, v{src(j)}")
    for j in range(16):
        e(f"v_exp_f32 v{GA+j}, v{GA+j}")
    e("s_nop 0")
    for j in range(16):
        e(f"v_add_f32 v{GA+j}, 1.0, v{GA+j}")
    for j in range(16):
        e(f"v_rcp_f32 v{GA+j}, v{GA+j}")
    e("s_nop 0")
    for j in range(0, 16, 2):
        e(f"v_pk_mul_f32 {vr(GA+j,2)}, {vr(GA+j,2)}, {vr(src(j),2)}")
    stamp("gate")
    e("s_barrier")
    stamp("B1")
    read_parts(TM, 16384)
    e("s_waitcnt lgkmcnt(4)")
    read_parts(TM + 32, 16384 + 8192)
    for h in range(2):
        e(f"s_waitcnt lgkmcnt({8 if h == 0 else 0})")
        sum_parts(TM + h*32)
        for j in range(0, 8, 2):
            e(f"v_pk_fma_f32 {vr(TM+h*32+j,2)}, {vr(TM+h*32+j,2)}, {vr(GA+h*8+j,2)}, {vr(XU+h*8+j,2)}")
        for j in range(4):
            e(f"v_cvt_pk_bf16_f32 v{XA+h*4+j}, v{TM+h*32+2*j}, v{TM+h*32+2*j+1}")
        e(f"buffer_store_dwordx4 {vr(XA+h*4,4)}, v{vOA}, {srd(OUT)}, s{sKVO if h == 0 else sKVST} offen {['', 'sc1', 'nt', 'sc0 sc1'][cfg.ost]}")
    e(f"""
s_or_b32 s{sT1}, s2, s{sU}
s_cmp_lg_u32 s{sT1}, 0
s_cbranch_scc1 L_fin
""")
    flag_store(WS_EPOCH, sT1)
    e("s_branch L_fin")

    e("L_fwave:")
    rounds(1)
    vFB, vW2O, vW2T, vL4, vPB = 3, 4, 6, 8, 9
    e(f"""
v_mov_b32 v{vFB}, {L_FB}
v_sub_u32 v{vDUM}, 1, v{vLANE}
v_max_i32 v{vDUM}, 0, v{vDUM}
s_lshl_b32 s{sREG}, s{sU}, 15
s_add_u32 s{sREG}, s{sREG}, {L_REG}
v_mov_b32 v{vW2O}, v{vWP}
v_add_u32 v{vW2O+1}, {8192-1024}, v{vWP}
v_add_u32 v{vW2T}, s{sREG}, v124
v_xor_b32 v{vW2T+1}, 64, v{vW2T}
v_and_b32 v{vL4}, 31, v{vLANE}
v_lshlrev_b32 v{vL4}, 7, v{vL4}
""")
    wait_tag("kvst")
    kv_publish()
    stamp("kpub")
    if cfg.ft == 1 and cfg.ehold != 2: ftouch(True, False)
    if cfg.stouch:
        nw2, nwo, sh = (11, 4, 31) if cfg.stouch == 1 else (43, 16, 7)
        e(f"""
s_and_b32 s{sT0}, s{sI}, {sh}
s_lshl_b32 s{sT0}, s{sT0}, 2
s_add_u32 s{sT0}, s{sT0}, s{sU}
s_lshl_b32 s{sT2}, s{sG}, 7
s_mul_i32 s{sT1}, s{sT0}, {nw2*1024}
s_min_u32 s{sT1}, s{sT1}, {(1376-nw2)*1024}
s_add_u32 s{sT1}, s{sT1}, s{sT2}
s_add_u32 s88, s{pW2}, s{sT1}
s_addc_u32 s89, s{pW2+1}, 0
s_mul_i32 s{sT1}, s{sT0}, {nwo*1024}
s_add_u32 s{sT1}, s{sT1}, s{sT2}
s_add_u32 s100, s{pWO}, s{sT1}
s_addc_u32 s101, s{pWO+1}, 0
""")
        for k in range(nwo): e(f"s_load_dword s{pBX}, s[100:101], {k*1024}")
        for k in range(nw2): e(f"s_load_dword s{pBX}, s[88:89], {k*1024}")
    nfb = [0]
    def fbar():
        nfb[0] += 1
        if cfg.fbp: e("s_setprio 3")
        e(f"s_mov_b64 exec, 1\nds_add_u32 v{vFB}, v{vDUM}\ns_mov_b64 exec, -1")
        lds_wait(0, 4 * nfb[0])
        if cfg.fbp: e(f"s_setprio {cfg.pm}")
    e(f"s_setprio {cfg.pm}")
    ACCS = [16, 96, 80]
    WO = OUT
    e(f"""
s_mov_b32 s{W}, s{pW2}
s_mov_b32 s{W+1}, s{pW2+1}
s_mov_b32 s{W+2}, 0x158000
s_mov_b32 s{WO}, s{pWO}
s_mov_b32 s{WO+1}, s{pWO+1}
s_mov_b32 s{WO+2}, 0x80000
s_mov_b32 s{WO+3}, 0x00020000
s_lshl_b32 s{sT0}, s{sG}, 7
s_mul_i32 s{sSTART}, s{sU}, {352*1024}
s_add_u32 s{sSTART}, s{sSTART}, s{sT0}
s_lshl_b32 s{sCST}, s{sU}, 14
s_add_u32 s{sCST}, s{sCST}, s{sT0}
s_lshl_b32 s{sWR}, s{sU}, 11
s_mul_i32 s{sINC}, s{sU}, {22*2048}
""")
    def fill_parts(rho):
        out = []
        for sd, stride, lo in ((WO, 131072, 16384), (W, 352*1024, 0)):
            for h in range(2):
                out.append(f"""s_add_u32 m0, s{sWR}, {L_REG + rho*32768 + lo + h*8192}
s_add_u32 s{sT2}, s{sCST}, {rho*stride + h*65536}
buffer_load_dwordx4 v{vW2O}, {srd(sd)}, s{sT2} offen lds""")
                out.append(f"buffer_load_dwordx4 v{vW2O+1}, {srd(sd)}, s{sT2} offen offset:1024 lds")
        return out
    if cfg.e23 and not cfg.ehold:
        for m in (2, 3):
            for p in e_parts(m): e(p); op(("e", m))
    for n in range(8):
        wait_tag(("e", n))
        stamp(f"ew{n}", 3)
        fbar()
        stamp(f"ef{n}", 3)
        def rd(s):
            for t in range(3):
                b = WF + (s * 3 + t) * 4
                a = vWB + (ESLOT[n&3] >> 1)
                o = (ESLOT[n&3] & 1) * 32768 + s * 6144 + t * 128
                e(f"ds_read_b64_tr_b16 {vr(b,2)}, v{a} offset:{o}")
                e(f"ds_read_b64_tr_b16 {vr(b+2,2)}, v{a} offset:{o+1536}")
        if (cfg.ehold == 1 and n < 2) or (cfg.ehold == 2 and n < cfg.npre): dq = []
        elif n == 0: dq = [] if cfg.e23 else [(("e", m), p) for m in (2, 3) for p in e_parts(m)]
        elif n <= 4: dq = [(("e", n + 3), p) for p in e_parts(n + 3)]
        else: dq = [("f", p) for p in fill_parts(ESLOT[(n - 1) & 3])]
        nq = len(dq)
        rd(0); rd(1)
        for s in range(4):
            if s + 2 < 4:
                e("s_waitcnt lgkmcnt(6)")
                rd(s + 2)
            e(f"s_waitcnt lgkmcnt({6 * min(2, 3 - s)})")
            for t in range(3):
                c = "0" if (n == 0 and s == 0) else vr(ACCS[t], 16)
                e(f"{MF} {vr(ACCS[t],16)}, {vr(WF+(s*3+t)*4,4)}, {vr(XF+n*16+s*4,4)}, {c}")
                idx = s * 3 + t
                while dq and (nq - len(dq)) * 12 <= idx * nq:
                    tag, p = dq.pop(0); e(p); op(tag)
        assert not dq
        if cfg.ehold == 2 and n == cfg.npre - 1:
            lds_wait(cfg.hw, 1 if cfg.hw == 12 else 8)
            if cfg.edel: e(f"s_sleep {cfg.edel}")
            for m in range(cfg.npre, cfg.npre + 3):
                for p in e_parts(m): e(p); op(("e", m))
            if cfg.ft == 1: ftouch(True, False)
        if cfg.ehold == 1 and n == 1:
            lds_wait(12, 1)
            e(f"s_sleep {cfg.edel}")
            if cfg.ft == 9: ftouch(True, False)
            for m in (2, 3, 4):
                for p in e_parts(m): e(p); op(("e", m))
        stamp(f"em{n}", 3)
    e(f"s_setprio {cfg.pv}\ns_nop 10")
    for t in range(3):
        h_store(WF + 8*t, ACCS[t])
        e(f"s_add_u32 s{sHST}, s{sHST}, 8192")
    e(f"s_setprio {cfg.pm}")
    stamp("ffn1")
    fbar()
    G, W2F, HF, NWIN, WOF = 16, 80, 104, 11, 192
    def dma2(sd, sbase, k, slot, tag):
        e(f"""
s_add_u32 m0, s{sREG}, {slot * 2048}
s_add_u32 s{sT0}, s{sbase}, {k*16*1024}
buffer_load_dwordx4 v{vW2O}, {srd(sd)}, s{sT0} offen lds
buffer_load_dwordx4 v{vW2O+1}, {srd(sd)}, s{sT0} offen offset:1024 lds
""")
        op(tag, 2)
    def h_issue(k):
        hb = HF + (k % NWIN) * 8
        e(f"""
s_add_u32 s{sT0}, s{sINC}, {k*2048}
buffer_load_dwordx4 {vr(hb,4)}, v{vL16}, {srd(H)}, s{sT0} offen sc1
buffer_load_dwordx4 {vr(hb+4,4)}, v{vL16}, {srd(H)}, s{sT0} offen offset:1024 sc1
""")
        op(("h", k), 2)
    def f2_reads(k):
        slot = (k % 16) * 2048
        b = W2F + (k % 3) * 8
        for ch in range(2):
            e(f"ds_read_b64_tr_b16 {vr(b+ch*4,2)}, v{vW2T+ch} offset:{slot}")
            e(f"ds_read_b64_tr_b16 {vr(b+ch*4+2,2)}, v{vW2T+ch} offset:{slot+1024}")
    wait_tag("hst")
    flag_store(WS_HF, sFLG)
    stamp("hpub", 3)
    for q, p in enumerate(fill_parts(ESLOT[3])):
        e(p)
        if q & 1: e(f"s_waitcnt vmcnt({cfg.pace})")
    e("s_waitcnt vmcnt(0)")
    fbar()
    stamp("w8", 3)
    for s_ in range(8):
        for ch in range(2):
            b = WOF + (s_ * 2 + ch) * 4
            e(f"ds_read_b64_tr_b16 {vr(b,2)}, v{vW2T+ch} offset:{16384 + s_*2048}")
            e(f"ds_read_b64_tr_b16 {vr(b+2,2)}, v{vW2T+ch} offset:{16384 + s_*2048 + 1024}")
        e("s_waitcnt lgkmcnt(8)")
    e("s_waitcnt lgkmcnt(0)")
    stamp("wr", 3)
    for k in range(8, 16):
        dma2(W, sSTART, k, k, "w")
        e(f"s_waitcnt vmcnt({cfg.pace})")
    e(f"s_lshl_b32 s{sRD}, s{sI}, 12\ns_add_u32 s{sRD}, s{sRD}, {WS_HF}")
    stamp("w16", 3)
    poll1(W2F, vL4, sRD)
    stamp("hpoll")
    e(f"s_setprio {cfg.pm2}")
    st["ops"] = []
    NK = 22
    nh = 0
    def h_upto(n):
        nonlocal nh
        while nh < min(n, NK):
            h_issue(nh); nh += 1
    h_upto(cfg.hlead)
    f2_reads(0); f2_reads(1)
    for k in range(NK):
        if k == cfg.early:
            for n in range(nh + 1, k + NWIN + 1):
                h_upto(n); e(f"s_waitcnt vmcnt({cfg.pace})")
            e(f"""
s_lshl_b32 s{sOK}, s{sI}, 16
s_lshl_b32 s{sT1}, s{sU}, 14
s_add_u32 s{sOK}, s{sOK}, s{sT1}
s_add_u32 s{sOK}, s{sOK}, {WS_O}
s_and_b32 s{sT2}, s{sG}, {1 if cfg.orot else 0}
s_lshl_b32 s{sT1}, s{sT2}, 10
s_add_u32 s{sOK}, s{sOK}, s{sT1}
s_lshl_b32 s{sDST}, s{sT2}, 13
s_lshl_b32 s{sRD}, s{sI}, 12
s_lshl_b32 s{sT1}, s{sU}, 10
s_add_u32 s{sRD}, s{sRD}, s{sT1}
s_add_u32 s{sRD}, s{sRD}, {WS_OF}
v_and_b32 v{vL4}, 0x380, v{vL4}
v_and_b32 v{vT0}, 31, v{vLANE}
v_lshrrev_b32 v{vT1}, 5, v{vLANE}
v_xor_b32 v{vT1}, v{vT1}, v{vLANE}
v_and_b32 v{vT1}, 15, v{vT1}
v_lshlrev_b32 v{vPB}, 8, v{vT0}
v_lshl_add_u32 v{vPB}, v{vT1}, 4, v{vPB}
v_add_u32 v{vPB}, s{sREG}, v{vPB}
s_lshl_b32 s{sT0}, s{sU}, 2
v_add_u32 v10, s{sT0}, v{vFB}
""")
            stamp("fe")
            lds_wait(32, 1, a=10, sl=4)
            e("s_setprio 1")
        h_upto(k + cfg.hlead + 1 if k < cfg.early else k + NWIN)
        if 1 <= k <= 6:
            dma2(W, sSTART, k + 15, k - 1, ("w", k + 15))
        if k + 2 < NK:
            wait_tag(("w", k + 2))
            f2_reads(k + 2)
        wait_tag(("h", k))
        e(f"s_waitcnt lgkmcnt({4 * min(2, NK - 1 - k)})")
        b = W2F + (k % 3) * 8
        hb = HF + (k % NWIN) * 8
        for r in range(2):
            for ch in range(2):
                g = G + (r * 2 + ch) * 16
                c = "0" if k == 0 else vr(g, 16)
                e(f"{MF} {vr(g,16)}, {vr(b+ch*4,4)}, {vr(hb+r*4,4)}, {c}")
    stamp("f22")
    AD = 80
    e("s_setprio 3")
    e(f"buffer_load_dword v{vONE}, v{vL4}, {srd(WS)}, s{sRD} offen sc1" if cfg.opre else f"v_mov_b32 v{vONE}, 0")
    for q in range(8):
        e(f"v_xor_b32 v{AD+q}, {q << 5}, v{vPB}")
    e("s_nop 1")
    for q in range(8):
        for r in range(2):
            e(f"ds_write_b128 v{AD+q}, {vr(G+r*32+q*4,4)} offset:{r*8192}")
    for q in range(8):
        e(f"v_add_u32 v{AD+q}, s{sDST}, v{AD+q}")
    l = e.lab()
    e(f"""
s_waitcnt lgkmcnt(0)
s_mov_b64 exec, 1
ds_add_u32 v{vFB}, v{vDUM} offset:4
s_mov_b64 exec, -1
s_waitcnt vmcnt(0)
{f"v_cmp_ne_u32 vcc, s{sTAG}, v{vONE}" if cfg.opre else ""}
{f"s_cbranch_vccz {l}" if cfg.opre else ""}
""")
    poll1(vONE, vL4, sRD, cfg.osl)
    e(f"{l}:")
    stamp("opoll")
    OF, SA = 128, 16
    for h in range(2):
        e(f"s_mov_b32 s{sT0}, s{sOK}" if h == 0 else f"s_xor_b32 s{sT0}, s{sOK}, 1024")
        for s_ in range(8):
            if s_ and s_ % 2 == 0:
                e(f"s_add_u32 s{sT0}, s{sT0}, 4096")
            e(f"buffer_load_dwordx4 {vr(OF+(h*8+s_)*4,4)}, v{vL16}, {srd(WS)}, s{sT0} offen offset:{(s_&1)*2048} sc1")
    for h in range(2):
        for s_ in range(8):
            e(f"s_waitcnt vmcnt({15 - h*8 - s_})")
            for ch in range(2):
                a = SA + h*32 + ch*16
                c = "0" if s_ == 0 else vr(a, 16)
                e(f"{MF} {vr(a,16)}, {vr(WOF+(s_*2+ch)*4,4)}, {vr(OF+(h*8+s_)*4,4)}, {c}")
            if h == 1 and s_ >= 4:
                for q in (2*(s_-4), 2*(s_-4)+1):
                    e(f"ds_write_b128 v{AD+q}, {vr(SA+q*4,4)} offset:16384")
    for q in range(8):
        e(f"v_xor_b32 v{AD+q}, 0x2000, v{AD+q}")
    e("s_nop 1")
    for q in range(8):
        e(f"ds_write_b128 v{AD+q}, {vr(SA+32+q*4,4)} offset:16384")
    e("s_waitcnt lgkmcnt(0)")
    stamp("omf")
    e("s_barrier")
    e("L_fin:")
    if cfg.stamps:
        e("s_waitcnt vmcnt(0)")
        stamp("end")
        e(f"""
s_memrealtime s[88:89]
s_waitcnt lgkmcnt(0)
v_writelane_b32 v15, s86, 62
v_writelane_b32 v15, s88, 63
s_lshl_b32 s{sT0}, s2, 3
s_add_u32 s{sT0}, s{sT0}, s{sWV}
s_lshl_b32 s{sT0}, s{sT0}, 8
s_add_u32 s{sT0}, s{sT0}, 0x8000000
v_lshlrev_b32 v{vT0}, 2, v{vLANE}
buffer_store_dword v15, v{vT0}, {srd(WS)}, s{sT0} offen
""")
    e("L_exit:\ns_endpgm")

    e(".p2align 6\nL_att:")
    def ex(S, a, b):
        for j in range(a, b):
            e(f"v_exp_f32 v{S+j}, v{S+j}" if not (cfg.xp & 8 and j & 1) else "s_nop 1")
    def cv(S, a, b):
        for j in range(a, b):
            e(f"v_cvt_pk_bf16_f32 v{PP+j}, v{S+2*j}, v{S+2*j+1}")
    K = lambda bb: vr(KV + bb*12, 4)
    V0 = lambda bb: vr(KV + bb*12 + 4, 4)
    SM, SL = "v_smfmac_f32_32x32x32_bf16", "v_smfmac_f32_16x16x64_bf16"
    AON, IDX = 248, 252
    LL = lambda t: KV + t*12 + 8
    for s in range(4):
        b = s; pb = (s - 1) % 4; nb = (s + 1) % 4
        for t in range(4):
            S, Sn = (S0, S1) if t % 2 == 0 else (S1, S0)
            tp = (t - 1) % 4
            vprev = V0(pb) if t == 0 else V0(b)
            tn = (t + 1) % 4
            ex(S, 0, 2)
            e(f"{SM} {vr(OO+tp*16,16)}, {vprev}, {vr(PP,8)}, v{IDX}")
            if t == 0:
                o = pb * 2048 - 4096
                e(f"global_load_dwordx4 {vr(KV+pb*12,4)}, v{vL16}, s[{KB}:{KB+1}] offset:{o} sc1")
                e(f"global_load_dwordx4 {vr(KV+pb*12+4,4)}, v{vL16}, s[{KB}:{KB+1}] offset:{o+1024} sc1")
                if pb == 3:
                    e(f"s_add_u32 s{sKVO}, s{sKVO}, s{sSTR}\ns_and_b32 s{sKVO}, s{sKVO}, 0x3ffff"); kv_base()
            if t == 1 and s == 3: e(f"s_sub_u32 s{sCNT}, s{sCNT}, 1")
            ex(S, 2, 6)
            if cfg.xp != 7: e(f"{SL} {vr(LL(tp),4)}, {vr(AON,4)}, {vr(PP,8)}, v{IDX}")
            ex(S, 6, 8)
            cv(S, 0, 4)
            if t == 3: e("s_waitcnt vmcnt(4)")
            e(f"{MF} {vr(Sn,16)}, {K(nb) if t == 3 else K(b)}, {vr(QQ+tn*4,4)}, {vr(CC+tn*16,16)}")
            ex(S, 8, 16)
            cv(S, 4, 8)
    e(f"s_cbranch_scc0 L_att\ns_setpc_b64 s[{RET}:{RET+1}]")

    e(f"""
L_slow:
s_waitcnt vmcnt(0)
s_mov_b32 s{sKVO}, 0
s_mov_b32 s{sCNT}, 64
v_mov_b32 v{vT0}, 0xff800000
v_mov_b32 v{vT1}, 0xff800000
L_slow_loop:
s_add_u32 s{KB}, s{KD}, s{sKVO}
s_addc_u32 s{KB+1}, s{KD+1}, 0
global_load_dwordx4 {vr(KV,4)}, v{vL16}, s[{KB}:{KB+1}] offset:-4096 sc1
s_add_u32 s{sKVO}, s{sKVO}, 2048
s_and_b32 s{sT0}, s{sKVO}, 8192
s_add_u32 s{sKVO}, s{sKVO}, s{sT0}
s_waitcnt vmcnt(0)
{MF} {vr(S0,16)}, {vr(KV,4)}, {vr(QQ,4)}, 0
{MF} {vr(S1,16)}, {vr(KV,4)}, {vr(QQ+4,4)}, 0
s_nop 15
s_nop 3
""")
    maxtree(vT0, S0, init=True)
    maxtree(vT1, S1, init=True)
    e(f"""
s_sub_u32 s{sCNT}, s{sCNT}, 1
s_cmp_lg_u32 s{sCNT}, 0
s_cbranch_scc1 L_slow_loop
s_mov_b32 s{sKVO}, 0
s_mov_b64 s[{KB}:{KB+1}], s[{KD}:{KD+1}]
s_mov_b32 s{sSTR}, 16384
{f"s_mov_b64 s[{sN}:{sN+1}], -1" if cfg.vm else ""}
s_mov_b32 s{sCNT}, 15
""")
    for j in range(4):
        e(f"v_mov_b32 v{KV+3*12+8+j}, 0\nv_mov_b32 v{PP+4+j}, 0")
    for b in range(3):
        kv_loads(b)
    for j in range(0, 32, 2):
        e(f"v_mov_b64 {vr(OO+j,2)}, 0")
    setc(CC, CC + 16)
    e(f"""
s_waitcnt vmcnt(6)
{MF} {vr(S0,16)}, {vr(KV,4)}, {vr(QQ,4)}, {vr(CC,16)}
s_nop 11
s_call_b64 s[{RET}:{RET+1}], L_att
s_nop 15
s_branch L_norm
L_codeend:
""")

    hdr = f"""; Fused kernel: LayerNorm -> QKV / FFN GEMMs -> attention -> out projection + gate (one launch, 256 workgroups).
; Kernarg: A_x, A_wqkv, A_wo, B_x (unused), B_w1, B_w2, out, debug, ws (8 bytes each).
{"; stamps=" + ("RT," if cfg.rt else "") + ",".join(names) if names else ";"}
; @launch grid=(256,1,1) block=(512,1,1) lds=163840
.amdgcn_target "amdgcn-amd-amdhsa--gfx950"
.text
.globl {cfg.kname}
.p2align 8
.type {cfg.kname},@function
{cfg.kname}:
"""
    ftr = f""".section .rodata,"a"
.p2align 6
.amdhsa_kernel {cfg.kname}
  .amdhsa_next_free_vgpr 256
  .amdhsa_next_free_sgpr 102
  .amdhsa_accum_offset 256
  .amdhsa_group_segment_fixed_size 0
  .amdhsa_kernarg_size 72
  .amdhsa_user_sgpr_count 2
  .amdhsa_user_sgpr_kernarg_segment_ptr 1
  .amdhsa_system_sgpr_workgroup_id_x 1
.end_amdhsa_kernel
"""
    return hdr + e.text() + ftr

if __name__ == "__main__":
    cfg = Cfg()
    out = f"cdna_kernels/{NAME}.s"
    for a in sys.argv[1:]:
        k, v = a.split("=")
        if k == "out":
            out = v
        else:
            assert hasattr(cfg, k), k
            setattr(cfg, k, int(v))
    open(out, "w").write(gen(cfg))
    print("wrote", out)
```

```python
import sys, struct, math

NAME = "recurrent_scan__softmax_full_mha__dense_activation_relu__prompt"

def f2u(x):
    return struct.unpack("<I", struct.pack("<f", x))[0]

class Cfg:
    stamps = 0
    rt = 0
    kname = NAME + "_kernel"
    force_slow = 0
    spin = 200000
    ctouch = 1
    lnsplit = 4
    nolagA = 1
    kvrot = 1
    orot = 1
    fl = 32
    qpub = 12
    epace = 3
    U = 1
    kdel = 18
    ehold = 3
    pub0 = 1
    hw = 12
    e0it = 5
    npre = 3
    supF = 3
    tn = 4
    h8 = 1
    ut = 0
    u0pos = 4
    g7 = 0
    pf = 0
    sf = 0
    opre = 0
    osl = 0
    dlate = 1
    dbg_pad = 0
    dbg_at = 0
    xmap = 0
    qsplit = 4
    a2pre = 0
    supos = 0
    ost = 1
    fastpro = 1
    xp = 0
    ft = 1
    ft1 = 4
    epre = 1
    nopre = 0
    edel = 0
    owarm = 0
    w2 = 0
    ldpos = 0
    pt = 0
    vm = 0
    pshift = 21
    kvx = 0
    frot = 0
    e23 = 1
    fbp = 1
    pm2 = 0
    ksleep = 4
    NB = 4
    early = 6
    ft2 = 0
    stouch = 0
    vt = 0
    vtpos = 2
    pace = 4
    dpace = 4
    hlead = 4
    ddelay = 1
    mearly = 0
    dearly = 1
    pm = 0
    pv = 0
    psleep = 4

WS_EPOCH = 0x0
WS_KVF = 0x8000
WS_HF = 0x20000
WS_OF = 0x40000
WS_KV = 0x100000
WS_H = 0x900000
H_BLK = 86 * 2048
WS_O = 0xF00000
WS_SIZE = 0x1100000

L_QX = 0
L_KX = 8192
L_FB = 12288
L_REG = 32768
XHI = L_REG + 3 * 32768

class E:
    def __init__(self):
        self.L = []
        self.nlab = 0
    def __call__(self, s):
        for line in s.strip("\n").split("\n"):
            line = line.rstrip()
            if not line.strip():
                continue
            if line.strip().endswith(":") and " " not in line.strip():
                self.L.append(line.strip())
            else:
                self.L.append("    " + line.strip())
    def lab(self, p="L"):
        self.nlab += 1
        return f"{p}_{self.nlab}"
    def text(self):
        return "\n".join(self.L) + "\n"

def vr(a, n):
    return f"v[{a}:{a+n-1}]"
MF = "v_mfma_f32_32x32x16_bf16"

def gen(cfg):
    e = E()
    NB = cfg.NB
    names = []
    def stamp(name, lvl=1):
        if cfg.stamps and (lvl == 1 or cfg.stamps == lvl):
            name = str(name)
            if name not in names: names.append(name)
            e("s_memrealtime s[84:85]\ns_waitcnt lgkmcnt(0)" if cfg.rt else "s_memtime s[84:85]\ns_waitcnt lgkmcnt(0)\ns_sub_u32 s84, s84, s82")
            e(f"v_writelane_b32 v15, s84, {names.index(name)}")
    X, W, WS, H, OUT = 4, 8, 12, 16, 20
    sWV, sI, sG, sROT, sTAG, sFLG = 24, 25, 26, 27, 28, 29
    sRD, sWR, sR, sSTART, sINC, sKVF = 30, 31, 32, 33, 34, 35
    sCST, sDST, sOK, sWRD = 36, 37, 38, 39
    sOFL = 44
    sN, sP0, sTH, sW2B, sHB2, sWX = 40, 41, 42, 43, 45, 47
    sONES = 46
    sVMASK = 50
    sT0, sT1, sT2, sT3 = 52, 53, 54, 55
    sKVST, sHST, sROLE, sCNT, sKVO, sREG = 56, 57, 58, 59, 60, 61
    sSPIN, sU = 62, 63
    pX, pWQKV, pWO, pBX, pW1, pW2, pOUT, pDBG, pWS = 64, 66, 68, 70, 72, 74, 76, 78, 80
    sPJ = 90
    RET = 94
    TS = 96
    KD = H
    srd = lambda b: f"s[{b}:{b+3}]"
    vLANE, vL16, vVO, vWO, vWC, vWT, vVS, vDUM, vONE, vT0, vT1 = 1, 2, 3, 4, 6, 8, 10, 11, 12, 13, 14
    vS1a, vS1b, vS2a, vS2b, vRS, vNM, vXW, vWROW, vXO = 16, 17, 18, 19, 20, 22, 24, 26, 27
    ACC, WF, ACC2 = 16, 32, 96
    PK = 96
    vXA, vW4, vWB, vWP = 112, 116, 120, 127
    XF = 128
    XRAW, XUN = 128, 160
    QQ, PP = 16, 240
    S0, S1, CC, OO = 32, 48, 64, 128
    KV = 192
    sSTR, sQS, QB = 42, 43, 40
    L_PARK = 13312

    st = {"ops": []}
    def op(tag, n=1): st["ops"].extend([tag] * n)
    def wait_tag(tag):
        ops = st["ops"]
        idx = [i for i, t in enumerate(ops) if t == tag]
        if idx:
            e(f"s_waitcnt vmcnt({len(ops) - 1 - max(idx)})")
    def flag_store(base, soff):
        e(f"""
v_mov_b32 v{vT0}, s{sTAG}
v_lshrrev_b32 v{vT1}, 2, v{vL16}
v_add_u32 v{vT1}, {base}, v{vT1}
s_mov_b32 exec_lo, {hex((1 << cfg.fl) - 1)}
s_mov_b32 exec_hi, 0
buffer_store_dword v{vT0}, v{vT1}, {srd(WS)}, s{soff} offen {['sc1', 'sc0 sc1'][cfg.sf]}
s_mov_b64 exec, -1
""")
    def poll1(vdst, vaddr, soff, first=0):
        lp, lpd = e.lab("LP"), e.lab("LPD")
        e(f"""
s_mov_b32 s{sSPIN}, {cfg.spin}
{lp}:
{f"s_sleep {first}" if first else ""}
buffer_load_dword v{vdst}, v{vaddr}, {srd(WS)}, s{soff} offen {['sc1', 'sc0 sc1', 'sc1 nt', 'sc0 sc1 nt'][cfg.pf]}
s_waitcnt vmcnt(0)
v_cmp_ne_u32 vcc, s{sTAG}, v{vdst}
s_cbranch_vccz {lpd}
{f's_sleep {cfg.psleep}' if cfg.psleep and not first else ''}
s_sub_u32 s{sSPIN}, s{sSPIN}, 1
s_cbranch_scc0 {lp}
{lpd}:
""")

    def lds_wait(off, n, a=3, sl=1):
        lp, lpd = e.lab("LW"), e.lab("LWD")
        e(f"""
s_mov_b32 s{sSPIN}, {cfg.spin * 8}
{lp}:
ds_read_b32 v{vT0}, v{a} offset:{off}
s_waitcnt lgkmcnt(0)
v_cmp_le_u32 vcc, {n}, v{vT0}
s_cbranch_vccnz {lpd}
s_sleep {sl}
s_sub_u32 s{sSPIN}, s{sSPIN}, 1
s_cbranch_scc0 {lp}
{lpd}:
""")
    e(f"""
s_load_dwordx2 s[{X}:{X+1}], s[0:1], 0
s_cmp_ge_u32 s2, 256
s_cbranch_scc1 L_exit
s_setprio 3
s_load_dwordx16 s[64:79], s[0:1], 0
s_load_dwordx2 s[80:81], s[0:1], 64
""")
    if cfg.stamps:
        e("s_memtime s[82:83]\ns_memrealtime s[86:87]\nv_mov_b32 v15, 0")
    e(f"""
s_lshl_b32 s{sT2}, s2, {[3, 4, 2][cfg.xmap]}
s_and_b32 s{sT2}, s{sT2}, {[24, 16, 28][cfg.xmap]}
s_bfe_u32 s{sT3}, s2, {['0x30003', '0x40003', '0x20003'][cfg.xmap]}
s_or_b32 s{sI}, s{sT2}, s{sT3}
s_and_b32 s{sT2}, s2, {[4, 6, 0][cfg.xmap]}
s_lshr_b32 s{sT3}, s2, {[6, 7, 5][cfg.xmap]}
s_or_b32 s{sG}, s{sT2}, s{sT3}
s_add_u32 s{sROT}, s{sI}, s{sG}
s_and_b32 s{sPJ}, s{sROT}, 3
s_add_u32 s{sROT}, s{sROT}, 1
s_and_b32 s{sPJ+1}, s{sROT}, 3
v_lshrrev_b32 v{vT0}, 3, v0
v_and_b32 v{vT1}, 7, v0
v_lshlrev_b32 v{vXO}, 4, v{vT1}
v_lshl_add_u32 v{vXO}, v{vT0}, 10, v{vXO}
s_lshl_b32 s{sT0}, s{sI}, 16
v_add_u32 v{vXO}, s{sT0}, v{vXO}
s_mov_b32 s{X+2}, 0x200000
s_mov_b32 s{X+3}, 0x00020000
s_waitcnt lgkmcnt(0)
""")
    def x_loads(half):
        for j in range(2*half, 2*half+2):
            e(f"s_lshl_b32 s{sT2}, s{sPJ+j}, 8")
            e(f"buffer_load_dwordx4 {vr(XRAW+j*8,4)}, v{vXO}, {srd(X)}, s{sT2} offen")
            e(f"buffer_load_dwordx4 {vr(XRAW+j*8+4,4)}, v{vXO}, {srd(X)}, s{sT2} offen offset:128")
            op(("x", 2*j)); op(("x", 2*j+1))
        e(f"s_setprio {2 - 2*half}")
    def vtouch():
        if not cfg.vt: return
        e(f"""
s_lshl_b32 s3, s2, 3
s_add_u32 s3, s3, s{sWV}
s_mul_i32 s{sT2}, s3, 768
v_lshl_add_u32 v30, v{vLANE}, 7, s{sT2}
v_min_u32 v31, {0x158000 - 4}, v30
s_lshl_b32 s3, s3, 8
v_lshl_add_u32 v28, v{vLANE}, 7, s3
s_mov_b64 exec, 63
""")
        if cfg.vt & 2:
            e(f"global_load_dword v29, v30, s[{pWQKV}:{pWQKV+1}]\nglobal_load_dword v29, v31, s[{pW1}:{pW1+1}]"); op("t", 2)
        if cfg.vt & 1:
            e(f"global_load_dword v29, v31, s[{pW2}:{pW2+1}]\ns_mov_b64 exec, 3\nglobal_load_dword v29, v28, s[{pWO}:{pWO+1}]"); op("t", 2)
        e("s_mov_b64 exec, -1")
    def ftouch(w2, w1):
        e(f"""
s_lshl_b32 s3, s2, 2
s_add_u32 s3, s3, s{sU}
s_mul_i32 s{sT0}, s3, 1408
v_lshl_add_u32 v125, v{vLANE}, 7, s{sT0}
v_min_u32 v125, {0x158000 - 4}, v125
s_mov_b64 exec, 0x7ff
""")
        if w1:
            e(f"global_load_dword v126, v125, s[{pW1}:{pW1+1}]"); op("t")
        if w2:
            e(f"""
global_load_dword v126, v125, s[{pW2}:{pW2+1}]
s_lshl_b32 s3, s3, 9
v_lshl_add_u32 v125, v{vLANE}, 7, s3
s_mov_b64 exec, 15
global_load_dword v126, v125, s[{pWO}:{pWO+1}]
"""); op("t", 2)
        e("s_mov_b64 exec, -1")
    def ptouch():
        e(f"""
v_lshlrev_b32 v28, {cfg.pshift}, v{vLANE}
v_add_u32 v28, 0x3000, v28
v_min_u32 v28, {WS_SIZE - 4}, v28
s_lshl_b32 s3, s2, 13
v_mov_b32 v30, s3
s_mov_b64 exec, {hex((1 << min(64, (WS_SIZE >> cfg.pshift) + 1)) - 1) if (WS_SIZE >> cfg.pshift) + 1 < 31 else -1}
global_load_dword v29, v28, s[{pWS}:{pWS+1}] sc1
s_mov_b64 exec, 1
global_load_dword v29, v30, s[{pOUT}:{pOUT+1}] sc1
s_mov_b64 exec, -1
""")
        op("t", 2)
    x_loads(0)
    e(f"""
s_load_dword s{sTAG}, s[{pWS}:{pWS+1}], {WS_EPOCH}
s_getpc_b64 s[88:89]
L_pc:
s_bfe_u32 s3, s2, 0x30003
s_mul_i32 s3, s3, 3
v_lshrrev_b32 v30, 6, v0
v_mul_u32_u24 v28, 24, v30
v_and_b32 v29, 3, v0
v_add3_u32 v28, v28, v29, s3
v_lshlrev_b32 v28, 7, v28
v_min_u32 v28, L_codeend-L_pc-4, v28
s_mov_b64 exec, 7
global_load_dword v29, v28, s[88:89]
s_mov_b64 exec, -1
v_readfirstlane_b32 s{sWV}, v30
v_and_b32 v{vLANE}, 63, v0
v_lshlrev_b32 v{vL16}, 4, v{vLANE}
s_xor_b32 s{sPJ+2}, s{sPJ}, 2
s_xor_b32 s{sPJ+3}, s{sPJ+1}, 2
""")
    op("ct")
    if cfg.pt == 1: ptouch()
    if cfg.vtpos == 0: vtouch()
    e(f"""
s_mov_b32 s{W}, s{pWQKV}
s_mov_b32 s{W+1}, s{pWQKV+1}
s_mov_b32 s{W+2}, 0x180000
s_mov_b32 s{W+3}, 0x00020000
v_bfe_u32 v{vXW}, v0, 4, 3
v_xor_b32 v{vXW}, v{vXW}, v{vT1}
v_lshlrev_b32 v{vXW}, 4, v{vXW}
v_lshl_add_u32 v{vXW}, v{vT0}, 7, v{vXW}
v_add_u32 v{vXW+1}, {XHI}, v{vXW}
v_lshrrev_b32 v{vWROW}, 3, v{vLANE}
v_bfe_u32 v{vT0}, v{vLANE}, 4, 1
v_lshlrev_b32 v{vT0}, 2, v{vT0}
v_xor_b32 v{vWP}, v{vT1}, v{vT0}
v_lshlrev_b32 v{vWP}, 4, v{vWP}
v_mul_u32_u24 v{vWO}, 3072, v{vWROW}
v_add_u32 v{vWO}, v{vWO}, v{vWP}
v_add_u32 v{vWO+1}, {8*3072-1024}, v{vWO}
v_lshl_add_u32 v{vWP}, v{vWROW}, 10, v{vWP}
s_lshr_b32 s{sROLE}, s{sWV}, 2
s_and_b32 s{sU}, s{sWV}, 3
s_and_b32 s{sR}, s{sWV}, 1
s_mul_i32 s{sSTART}, s{sU}, {16*3072}
s_lshl_b32 s{sT2}, s{sG}, 7
s_add_u32 s{sSTART}, s{sSTART}, s{sT2}
s_mul_i32 s{sT3}, s{sT2}, 3
s_mul_i32 s{sDST}, s{sU}, {16*2752}
s_add_u32 s{sDST}, s{sDST}, s{sT3}
s_mul_i32 s{sCST}, s{sWV}, {8*3072}
s_add_u32 s{sCST}, s{sCST}, s{sT2}
s_mov_b32 s{TS}, s{pW1}
s_mov_b32 s{TS+1}, s{pW1+1}
s_mov_b32 s{TS+2}, 0x158000
s_mov_b32 s{TS+3}, 0x00020000
s_mul_i32 s{sWR}, s{sWV}, 3072
s_add_u32 s{sWR}, s{sWR}, {L_REG}
s_mul_i32 s{sWRD}, s{sU}, 6144
s_add_u32 s{sWRD}, s{sWRD}, {L_REG}
s_lshl_b32 s{sINC}, s{sROLE}, 10
s_add_u32 s{sINC}, s{sINC}, s{sSTART}
s_add_u32 s{sINC}, s{sINC}, 1024
s_mov_b32 s{sONES}, 0x3f803f80
s_mov_b32 s{WS}, s{pWS}
s_mov_b32 s{WS+1}, s{pWS+1}
s_mov_b32 s{WS+2}, {0x10000000 if cfg.stamps else WS_SIZE}
s_mov_b32 s{WS+3}, 0x00020000
s_bfe_u32 s{sT1}, s{sWV}, 0x10001         ; ct
s_lshl_b32 s{sT3}, s{sG}, 1
s_add_u32 s{sT3}, s{sT3}, s{sT1}
s_lshl_b32 s{sKVST}, s{sT3}, 19
s_lshr_b32 s{sT3}, s{sI}, 1
s_lshl_b32 s{sT3}, s{sT3}, 2
s_and_b32 s{sT0}, s{sI}, 1
s_add_u32 s{sT3}, s{sT3}, s{sT0}
s_lshl_b32 s{sT3}, s{sT3}, 1
s_add_u32 s{sT3}, s{sT3}, s{sR}
s_lshl_b32 s{sT3}, s{sT3}, 11
s_add_u32 s{sKVST}, s{sKVST}, s{sT3}
s_add_u32 s{sKVST}, s{sKVST}, {WS_KV}
s_mul_i32 s{sT3}, s{sG}, 6
s_add_u32 s{sT3}, s{sT3}, s{sT1}
s_lshl_b32 s{sHST}, s{sT3}, 12
s_lshl_b32 s{sT3}, s{sR}, 10
s_add_u32 s{sHST}, s{sHST}, s{sT3}
s_lshl_b32 s{sRD}, s{sG}, 12
s_lshl_b32 s{sT3}, s{sI}, 7
s_add_u32 s{sKVF}, s{sRD}, s{sT3}
s_add_u32 s{sRD}, s{sRD}, {WS_KVF}
s_lshl_b32 s{sT0}, s{sI}, 12
s_lshl_b32 s{sT3}, s{sU}, 7
s_add_u32 s{sT0}, s{sT0}, s{sT3}
s_lshl_b32 s{sT3}, s{sG}, 9
s_add_u32 s{sFLG}, s{sT0}, s{sT3}
v_and_b32 v{vT0}, 31, v{vLANE}
v_bfe_u32 v{vT1}, v{vLANE}, 1, 3
v_lshrrev_b32 v{vONE}, 5, v{vLANE}        ; hh
v_xor_b32 v{vXA}, v{vONE}, v{vT1}
v_lshlrev_b32 v{vXA}, 4, v{vXA}
v_lshl_add_u32 v{vXA}, v{vT0}, 7, v{vXA}
s_lshl_b32 s{sT3}, s{sR}, 12
s_add_u32 s{sT3}, s{sT3}, {XHI}
v_add_u32 v{vXA}, s{sT3}, v{vXA}
v_xor_b32 v{vXA+1}, 32, v{vXA}
v_xor_b32 v{vXA+2}, 64, v{vXA}
v_xor_b32 v{vXA+3}, 0x60, v{vXA}
v_bfe_u32 v{vVS}, v{vLANE}, 4, 1
v_and_b32 v{vT1}, 3, v{vLANE}
v_lshlrev_b32 v{vWB+1}, 3, v{vT1}
v_lshl_add_u32 v{vWB+1}, v{vVS}, 5, v{vWB+1}
v_bfe_u32 v{vT0}, v{vLANE}, 3, 1
v_lshl_add_u32 v{vDUM}, v{vT0}, 6, v{vWB+1}    ; + (rr>>1)*64
v_bfe_u32 v{vT0}, v{vLANE}, 2, 2          ; rr
v_lshl_add_u32 v{vWB}, v{vONE}, 3, v{vT0}      ; 8hh+rr
v_lshl_add_u32 v{vWT}, v{vT0}, 7, v{vDUM}
s_lshl_b32 s{sT3}, s{sT1}, 6
v_xor_b32 v{vWT}, s{sT3}, v{vWT}
v_mul_u32_u24 v{vWT+1}, 3072, v{vONE}
v_add_u32 v{vWT}, v{vWT}, v{vWT+1}
v_add_u32 v{vWT}, {L_REG}, v{vWT}
v_add_u32 v{vWT+1}, 49152, v{vWT}
v_mul_u32_u24 v{vWB}, 384, v{vWB}
s_lshl_b32 s{sT3}, s{sT1}, 6
v_xor_b32 v{vWB+1}, s{sT3}, v{vDUM}
v_add_u32 v{vWB}, v{vWB}, v{vWB+1}
v_add_u32 v{vWB}, {L_REG}, v{vWB}
v_add_u32 v{vWB+1}, 0x10000, v{vWB}
v_lshl_add_u32 v124, v{vONE}, 2, v{vT0}
v_lshl_add_u32 v124, v124, 7, v{vDUM}
v_and_b32 v{vT1}, 15, v{vLANE}
v_lshlrev_b32 v{vVO}, 4, v{vT1}
v_lshl_add_u32 v{vVO}, v{vONE}, 8, v{vVO}
v_add_u32 v{vVO}, 1024, v{vVO}
v_lshl_add_u32 v{vVS}, v{vVS}, 18, v{vVO}
v_mov_b64 {vr(vS1a,2)}, 0
v_mov_b64 {vr(vS2a,2)}, 0
s_mov_b32 s{sT3}, 0xffff0000
""")
    x_loads(1)
    if cfg.vtpos == 1: vtouch()
    stamp("setup")

    ESLOT = [3, 0, 1, 2]
    def u_parts(n, role=0):
        j, h = divmod(n, 2)
        return [f"""
s_mul_i32 s{sT2}, s{sPJ+j}, {128*3072}
s_add_u32 m0, s{sWR}, {(n & 3) * 24576}
s_add_u32 s{sT2}, s{sT2}, s{sCST}
""" + (f"s_add_u32 s{sT2}, s{sT2}, {64*3072}\n" if h else "") + f"buffer_load_dwordx4 v{vWO}, {srd(W)}, s{sT2} offen lds",
f"buffer_load_dwordx4 v{vWO}, {srd(W)}, s{sT2} offen offset:1024 lds",
f"buffer_load_dwordx4 v{vWO}, {srd(W)}, s{sT2} offen offset:2048 lds"]
    def e_parts(n):
        j, h = divmod(n, 2)
        out = []
        for bl in range(2):
            for q in range(3):
                pre = ""
                if q == 0 and bl == 0:
                    pre = f"s_mul_i32 s{sT2}, s{sPJ+j}, {128*2752}\ns_add_u32 m0, s{sWRD}, {ESLOT[n&3]*32768}\ns_add_u32 s{sT2}, s{sT2}, s{sDST}\n"
                    if h: pre += f"s_add_u32 s{sT2}, s{sT2}, {64*2752}\n"
                if q == 0 and bl == 1:
                    pre = f"s_add_u32 m0, s{sWRD}, {ESLOT[n&3]*32768+3072}\ns_add_u32 s{sT2}, s{sT2}, {8*2752}\n"
                out.append(pre + f"buffer_load_dwordx4 v{vW4+q}, {srd(TS)}, s{sT2} offen offset:{q*1024} lds")
        return out

    def unpack(n):
        for q in range(4):
            x = XRAW + n * 4 + q
            e(f"v_lshlrev_b32 v{XUN + (n*4+q)*2}, 16, v{x}")
            e(f"v_and_b32 v{XUN + (n*4+q)*2 + 1}, s{sT3}, v{x}")
    for n in range(8):
        if n == cfg.u0pos:
            for p in u_parts(0, 0): e(p); op(("u", 0))
            if cfg.ut:
                e(f"""
v_lshlrev_b32 v28, 10, v{vLANE}
s_add_u32 s{sT2}, s{sT2}, {64*3072}
s_mov_b64 exec, 0xffffff
buffer_load_dword v29, v28, {srd(W)}, s{sT2} offen
s_mov_b64 exec, -1
""")
                op("t")
            if cfg.vtpos == 3: vtouch()
        wait_tag(("x", n))
        for q in range(4):
            x = XRAW + n * 4 + q
            e(f"v_dot2c_f32_bf16 v{vS1a + (q&1)}, s{sONES}, v{x}")
            e(f"v_dot2c_f32_bf16 v{vS2a + (q&1)}, v{x}, v{x}")
        if n < cfg.lnsplit: unpack(n)
    if cfg.vtpos == 2: vtouch()
    if cfg.pt == 2: ptouch()
    stamp("LN1", 2)
    e(f"""
s_nop 2
v_add_f32 v{vS1a}, v{vS1a}, v{vS1b}
v_add_f32 v{vS2a}, v{vS2a}, v{vS2b}
s_nop 1
v_add_f32_dpp v{vS1a}, v{vS1a}, v{vS1a} quad_perm:[1,0,3,2] row_mask:0xf bank_mask:0xf
v_add_f32_dpp v{vS2a}, v{vS2a}, v{vS2a} quad_perm:[1,0,3,2] row_mask:0xf bank_mask:0xf
s_nop 1
v_add_f32_dpp v{vS1a}, v{vS1a}, v{vS1a} quad_perm:[2,3,0,1] row_mask:0xf bank_mask:0xf
v_add_f32_dpp v{vS2a}, v{vS2a}, v{vS2a} quad_perm:[2,3,0,1] row_mask:0xf bank_mask:0xf
s_nop 1
v_add_f32_dpp v{vS1a}, v{vS1a}, v{vS1a} row_half_mirror row_mask:0xf bank_mask:0xf
v_add_f32_dpp v{vS2a}, v{vS2a}, v{vS2a} row_half_mirror row_mask:0xf bank_mask:0xf
v_mul_f32 v{vNM}, {hex(f2u(-1.0/512))}, v{vS1a}
v_mul_f32 v{vS2a}, {hex(f2u(1.0/512))}, v{vS2a}
v_fma_f32 v{vS2a}, -v{vNM}, v{vNM}, v{vS2a}
v_max_f32 v{vS2a}, 0, v{vS2a}
v_add_f32 v{vS2a}, {hex(f2u(1e-5))}, v{vS2a}
v_rsq_f32 v{vRS}, v{vS2a}
s_waitcnt lgkmcnt(0)
v_mul_f32 v{vNM}, v{vNM}, v{vRS}
s_mul_i32 s{sTAG}, s{sTAG}, 0x9E3779B1
s_add_u32 s{sTAG}, s{sTAG}, 0x7F4A7C15
""")
    for n in range(8):
        if n >= cfg.lnsplit: unpack(n)
        for q in range(4):
            u = XUN + (n*4+q)*2
            e(f"v_pk_fma_f32 {vr(u,2)}, {vr(u,2)}, {vr(vRS,2)}, {vr(vNM,2)} op_sel_hi:[1,0,0]")
        for q in range(4):
            u = XUN + (n*4+q)*2
            e(f"v_cvt_pk_bf16_f32 v{XRAW+n*4+q}, v{u}, v{u+1}")
        if n < 4:
            e(f"ds_write_b128 v{vXW+1}, {vr(XRAW+n*4,4)} offset:{n*8192}")
        else:
            e(f"ds_write_b128 v{vXW}, {vr(XRAW+n*4,4)} offset:{(n-4)*8192}")
    stamp("LN2", 2)
    for p in u_parts(1, 0): e(p); op(("u", 1))
    if cfg.a2pre:
        for p in u_parts(2, 0): e(p); op(("u", 2))
    ops0 = list(st["ops"])

    def tiles(role): return [(1, ACC), (0, ACC2)] if role == 0 else [(2, ACC)]
    def tr_list(it, role):
        out = []
        for s in range(4):
            for q, (strip, acc) in enumerate(tiles(role)):
                b = WF + (it & 1) * 32 + (s * 2 + q) * 4
                a = vWT + ((it & 3) >> 1)
                o = (it & 1) * 24576 + s * 6144 + strip * 1024
                out.append([f"ds_read_b64_tr_b16 {vr(b,2)}, v{a} offset:{o}", f"ds_read_b64_tr_b16 {vr(b+2,2)}, v{a} offset:{o+512}"])
        return out
    def x_list(n):
        return [f"ds_read_b128 {vr(XF + n*16 + s*4, 4)}, v{vXA+s} offset:{(n&3)*8192}" for s in range(4)]
    def mf_list(n, role):
        out = []
        for s in range(4):
            for q, (strip, acc) in enumerate(tiles(role)):
                c = "0" if (n == 0 and s == 0) else vr(acc, 16)
                w, x = vr(WF+(n&1)*32+(s*2+q)*4,4), vr(XF+n*16+s*4,4)
                out.append(f"{MF} {vr(acc,16)}, {x}, {w}, {c}" if role == 1 else f"{MF} {vr(acc,16)}, {w}, {x}, {c}")
        return out
    def cvt_acc(dst, src):
        for j in range(8):
            e(f"v_cvt_pk_bf16_f32 v{dst+j}, v{src+2*j}, v{src+2*j+1}")
    def h_store(dst, src):
        cvt_acc(dst, src)
        for j in range(8):
            e(f"v_pk_max_i16 v{dst+j}, v{dst+j}, 0")
        e(f"""
buffer_store_dwordx4 {vr(dst,4)}, v{vL16}, {srd(H)}, s{sHST} offen sc1
buffer_store_dwordx4 {vr(dst+4,4)}, v{vL16}, {srd(H)}, s{sHST} offen offset:2048 sc1
""")
        op("hst", 2)
    vV4 = 248
    KB = 48
    def kv_base():
        e(f"s_add_u32 s{KB}, s{KD}, s{sKVO}\ns_addc_u32 s{KB+1}, s{KD+1}, 0")
    def kv_loads(b, wrap=True, mask=False):
        o = b * 2048 - 4096
        e(f"""
global_load_dwordx4 {vr(KV+b*12,4)}, v{vL16}, s[{KB}:{KB+1}] offset:{o} sc1
{f"s_mov_b64 exec, s[{sN}:{sN+1}]" if mask else ""}
global_load_dwordx4 {vr(KV+b*12+4,4)}, v{vV4+b*2}, s[{KB}:{KB+1}] offset:{o} sc1
global_load_dwordx4 {vr(KV+b*12+8,4)}, v{vV4+b*2+1}, s[{KB}:{KB+1}] offset:{o+512} sc1
{"s_mov_b64 exec, -1" if mask else ""}
""")
        if b == 3:
            e(f"s_add_u32 s{sKVO}, s{sKVO}, s{sSTR}\ns_and_b32 s{sKVO}, s{sKVO}, 0x3ffff")
            kv_base()
    def kv_publish():
        l = e.lab()
        e(f"""
v_mov_b32 v{vT1}, {L_FB + 8}
v_mov_b32 v{vT0}, 1
s_mov_b64 exec, 1
ds_add_rtn_u32 v{vT0}, v{vT1}, v{vT0}
s_waitcnt lgkmcnt(0)
v_cmp_eq_u32 vcc, 7, v{vT0}
s_mov_b64 exec, -1
s_cbranch_vccz {l}
""")
        flag_store(WS_KVF, sKVF)
        e(f"{l}:")
    def iteration(mfs, trs, xs, dq):
        n = len(trs)
        for s in range(n):
            if mfs: e(mfs[s])
            for l in xs[s * 4 // n:(s + 1) * 4 // n]: e(l)
            for l in trs[s]: e(l)
            for _ in range((len(dq) + n - s - 1) // (n - s) if n == 4 or s & 1 == 0 or len(dq) > 4 else 0):
                tag, p = dq.pop(0); e(p); op(tag)
        while dq:
            tag, p = dq.pop(0); e(p); op(tag)
    def epiA(role):
        if role == 0:
            l = e.lab()
            e(f"""
s_and_b32 s{sT0}, s{sKVST}, 0x3fff
s_lshr_b32 s{sT0}, s{sT0}, 1
s_and_b32 s{sQS}, s{sKVST}, 0xffffc000
s_add_u32 s{sQS}, s{sQS}, s{sT0}
s_add_u32 s{sQS}, s{sQS}, 12288
s_mov_b32 s{sT2}, {hex(f2u(0.25*math.log2(math.e)))}
s_add_u32 s{sT0}, s{sKVST}, 0x40000
s_lshl_b32 s{sT1}, s{sWV}, 10
v_add_u32 v{vT0}, s{sT1}, v{vL16}
v_mov_b32 v{vT1}, 0
v_lshrrev_b32 v{vDUM}, 2, v{vL16}
s_nop 0
""")
            for j in range(16):
                e(f"v_mul_f32 v{ACC+j}, s{sT2}, v{ACC+j}")
            cvt_acc(WF, ACC)
            e(f"""
buffer_store_dwordx4 {vr(WF,4)}, v{vL16}, {srd(WS)}, s{sKVST} offen sc1
buffer_store_dwordx4 {vr(WF+4,4)}, v{vL16}, {srd(WS)}, s{sT0} offen sc1
s_add_u32 s{sT0}, s{sQS}, 0x40000
""")
            cvt_acc(WF + 8, ACC2)
            e(f"""
buffer_store_dwordx4 {vr(WF+8,4)}, v{vL16}, {srd(WS)}, s{sQS} offen sc1
buffer_store_dwordx4 {vr(WF+12,4)}, v{vL16}, {srd(WS)}, s{sT0} offen sc1
s_bitcmp1_b32 s{sWV}, 0
s_cbranch_scc1 {l}
ds_write_b128 v{vT0}, {vr(WF,4)} offset:{L_KX}
ds_write_b128 v{vT0}, {vr(WF+4,4)} offset:{L_KX+1024}
ds_write_b32 v{vDUM}, v{vT1} offset:{L_FB}
{l}:
""")
        else:
            e("s_nop 11")
            cvt_acc(PK, ACC)
            e(f"""
buffer_store_dwordx4 {vr(PK,4)}, v{vVS}, {srd(WS)}, s{sKVST} offen sc1
buffer_store_dwordx4 {vr(PK+4,4)}, v{vVS}, {srd(WS)}, s{sKVST} offen offset:512 sc1
""")
        op("kvst", 2)
        stamp("epiA")
    PL = 241
    def rounds(role):
        st["ops"] = list(ops0)
        for it in range(8):
            wait_tag(("u", it))
            stamp(f"w{it}", 2)
            e("s_waitcnt lgkmcnt(0)\ns_barrier")
            stamp(f"b{it}", 1 if it == 0 else 2)
            U = lambda n: [(("u", n), p) for p in u_parts(n)]
            dq = (U(2) + U(3)) if it == 0 else (U(it + 3) if it + 3 < 8 else [])
            if role == 1 and 0 <= it - cfg.e0it < cfg.npre: dq = [(("e", it - cfg.e0it), p) for p in e_parts(it - cfg.e0it)]
            iteration(mf_list(it - 1, role) if it else None, tr_list(it, role), x_list(it), dq)
            if role == 1 and (cfg.ft1 == it + 1 or cfg.ft2 == it + 1): ftouch(cfg.ft2 == it + 1, cfg.ft1 == it + 1)
            if it == 3:
                for s in range(4):
                    e(f"v_subrev_u32 v{vXA+s}, {XHI}, v{vXA+s}")
            if it == 7:
                e("s_waitcnt lgkmcnt(0)")
                for m in mf_list(7, role): e(m)
                epiA(role)
                e("s_waitcnt lgkmcnt(0)\ns_barrier")
                stamp("b8")
            if it == cfg.supF and role == 1:
                e(f"""
v_mov_b64 {vr(PK+8,2)}, 0
v_mov_b64 {vr(PK+10,2)}, 0
s_mov_b64 exec, 1
v_mov_b32 v{PK+8}, s{sONES}
v_mov_b32 v{PK+9}, s{sONES}
v_mov_b32 v{PK+10}, s{sONES}
v_mov_b32 v{PK+11}, s{sONES}
s_and_b32 s{sT0}, s{sKVST}, 0xffffc000
s_lshl_b32 s{sT1}, s{sR}, 18
s_add_u32 s{sT0}, s{sT0}, s{sT1}
s_add_u32 s{sT0}, s{sT0}, 8192
s_mov_b64 exec, 0xff
buffer_store_dwordx4 {vr(PK+8,4)}, v{vL16}, {srd(WS)}, s{sT0} offen sc1
s_mov_b64 exec, -1
""")
                op("ones")
                for q in range(3):
                    e(f"""
v_add_u32 v{vT0}, {q*64}, v{vLANE}
v_mul_u32_u24 v{vT1}, 2731, v{vT0}
v_lshrrev_b32 v{vT1}, 16, v{vT1}
v_mul_u32_u24 v{vW4+q}, 24, v{vT1}
v_sub_u32 v{vT0}, v{vT0}, v{vW4+q}
v_mul_u32_u24 v{vW4+q}, 2752, v{vT1}
v_lshlrev_b32 v{vT1}, 1, v{vT1}
v_and_b32 v{vT1}, 4, v{vT1}
v_xor_b32 v{vT0}, v{vT0}, v{vT1}
v_lshl_add_u32 v{vW4+q}, v{vT0}, 4, v{vW4+q}
""")
                    if q: e(f"v_subrev_u32 v{vW4+q}, {q*1024}, v{vW4+q}")
            if it == cfg.supF and role == 1:
                e(f"""
s_mul_i32 s{sT0}, s{sI}, {H_BLK}
s_add_u32 s{sT0}, s{sT0}, {WS_H}
s_add_u32 s{H}, s{pWS}, s{sT0}
s_addc_u32 s{H+1}, s{pWS+1}, 0
s_mov_b32 s{H+2}, {H_BLK}
s_mov_b32 s{H+3}, 0x00020000
""")
    e(f"s_cmp_lg_u32 s{sROLE}, 0\ns_cbranch_scc1 L_fwave")
    rounds(0)
    e("s_setprio 2")
    e(f"""
s_and_b32 s{sT1}, s{sI}, 1
s_lshl_b32 s{sT1}, s{sT1}, 1
s_lshr_b32 s{sT0}, s{sU}, 1
s_add_u32 s{sOFL}, s{sT1}, s{sT0}
s_lshl_b32 s{sT0}, s{sG}, 2
s_add_u32 s{sT0}, s{sT0}, s{sOFL}
s_lshl_b32 s{sT0}, s{sT0}, 18
s_add_u32 s{sT0}, s{sT0}, {WS_KV + 4096}
s_add_u32 s{KD}, s{pWS}, s{sT0}
s_addc_u32 s{KD+1}, s{pWS+1}, 0
s_and_b32 s{sT0}, s{sI}, 24
s_lshl_b32 s{sKVO}, s{sT0}, 13
s_lshl_b32 s{sT0}, s{sR}, 14
s_add_u32 s{sKVO}, s{sKVO}, s{sT0}
s_add_u32 s{KB}, s{KD}, s{sKVO}
s_addc_u32 s{KB+1}, s{KD+1}, 0
s_mov_b32 s{sSTR}, 32768
s_lshr_b32 s{sT0}, s{sI}, 1
s_lshl_b32 s{sT0}, s{sT0}, 14
s_add_u32 s{sT0}, s{sT0}, 8192
s_add_u32 s{QB}, s{KD}, s{sT0}
s_addc_u32 s{QB+1}, s{KD+1}, 0
v_and_b32 v{vONE}, 27, v{vLANE}
v_cmp_ne_u32 vcc, 16, v{vONE}
s_mov_b32 s{sVMASK}, 0xffff0000
s_mov_b32 s{sVMASK+1}, 0xffff0000
v_cndmask_b32 v{vONE}, 0, 16, vcc
s_lshl_b32 s{sT0}, s{sR}, 11
v_add_u32 v{vWC}, s{sT0}, v{vL16}
v_xor_b32 v{vWC+1}, 2048, v{vWC}
s_lshl_b32 s{sT0}, s{sOFL}, 10
v_add_u32 v{vVS}, s{sT0}, v{vL16}
""")
    for j in range(0, 64, 2):
        e(f"v_mov_b64 {vr(OO+j,2)}, 0")
    for q in range(8):
        o = (q >> 1) * 2048 - 4096 + (q & 1) * 512
        e(f"v_add_u32 v{vT0}, {4096 - o}, v{vONE}\nv_cndmask_b32 v{vV4+q}, v{vVO}, v{vT0}, s[{sVMASK}:{sVMASK+1}]")
    PL, PL2 = 12, 10
    sv = cfg.psleep; cfg.psleep = cfg.ksleep
    e(f"""
ds_read_b128 {vr(PP,4)}, v{vVS} offset:{L_KX}
v_mov_b64 {vr(KV+3*12+8,2)}, 0
v_mov_b64 {vr(KV+3*12+10,2)}, 0
v_and_b32 v{vDUM}, 7, v{vLANE}
v_lshlrev_b32 v{vDUM}, 7, v{vDUM}
s_and_b32 s{sHST}, s{sKVF}, 0xfffffc00
s_add_u32 s{sHST}, s{sHST}, {WS_KVF}
v_mov_b32 v{vWO+1}, {L_FB}
v_and_b32 v{vWO}, 31, v{vLANE}
v_lshlrev_b32 v{vWO}, 7, v{vWO}
""")
    e("s_waitcnt vmcnt(0)")
    kv_publish()
    stamp("kpub")
    l0, l1 = e.lab(), e.lab()
    e(f"s_cmp_lg_u32 s{sU}, 0\ns_cbranch_scc1 {l0}")
    lds_wait(8, 8, a=vWO+1)
    poll1(PL, vDUM, sHST, cfg.kdel)
    e(f"v_mov_b32 v{vT0}, 1\nds_write_b32 v{vWO+1}, v{vT0} offset:12\ns_branch {l1}\n{l0}:")
    lds_wait(12, 1, a=vWO+1)
    e(f"{l1}:")
    stamp("kvpoll")
    for t in range(4):
        e(f"global_load_dwordx4 {vr(QQ+t*4,4)}, v{vWC+(t>>1)}, s[{QB}:{QB+1}] offset:{(t&1)*1024} sc1")
    kv_loads(0); kv_loads(1); kv_loads(2)
    def maxtree(dst, S, init=None):
        if init is None:
            e(f"v_max3_f32 v{dst}, v{S}, v{S+1}, v{S+2}")
            e(f"v_max_f32 v{dst}, v{dst}, v{S+15}")
            rest = list(range(3, 15))
        else:
            rest = list(range(16))
        for j in range(0, len(rest), 2):
            e(f"v_max3_f32 v{dst}, v{dst}, v{S+rest[j]}, v{S+rest[j+1]}")
    def setc(ca, cb):
        e(f"""
v_mov_b32 v{ca}, v{vT0}
v_mov_b32 v{cb}, v{vT1}
s_nop 1
v_permlane32_swap_b32 v{ca}, v{vT0}
v_permlane32_swap_b32 v{cb}, v{vT1}
s_nop 1
v_max_f32 v{vT0}, v{vT0}, v{ca}
v_max_f32 v{vT1}, v{vT1}, v{cb}
v_sub_f32 v{ca}, 0, v{vT0}
v_sub_f32 v{ca+1}, 0, v{vT0}
v_sub_f32 v{cb}, 0, v{vT1}
v_sub_f32 v{cb+1}, 0, v{vT1}
""")
        for j in range(2, 16, 2):
            e(f"v_mov_b64 {vr(ca+j,2)}, {vr(ca,2)}")
        for j in range(2, 16, 2):
            e(f"v_mov_b64 {vr(cb+j,2)}, {vr(cb,2)}")
    e("s_waitcnt vmcnt(9)")
    for t in range(4):
        e(f"{MF} {vr(CC+t*16,16)}, {vr(PP,4)}, {vr(QQ+t*4,4)}, 0")
    e(f"v_mov_b64 {vr(PP+4,2)}, 0\nv_mov_b64 {vr(PP+6,2)}, 0\ns_nop 6")
    maxtree(vT0, CC); maxtree(vT1, CC + 16)
    setc(CC, CC + 16)
    e(f"s_waitcnt vmcnt(6)\n{MF} {vr(S0,16)}, {vr(KV,4)}, {vr(QQ,4)}, {vr(CC,16)}")
    maxtree(vT0, CC + 32); maxtree(vT1, CC + 48)
    setc(CC + 32, CC + 48)
    if cfg.vm: e(f"s_mov_b64 s[{sN}:{sN+1}], -1")
    stamp("att0")
    V1 = lambda bb: vr(KV + bb*12 + 8, 4)
    e(f"""
buffer_load_dword v{PL2}, v{vWO}, {srd(WS)}, s{sRD} offen sc1
s_mov_b32 s{sCNT}, 0
s_call_b64 s[{RET}:{RET+1}], L_att
v_cmp_ne_u32 vcc, s{sTAG}, v{PL2}
s_cbranch_vccz L_kvall
""")
    poll1(PL2, vWO, sRD)
    cfg.psleep = sv
    e("L_kvall:")
    if cfg.vm: e(f"s_mov_b32 s{sN}, 0xffff\ns_mov_b32 s{sN+1}, 0xffff")
    if cfg.stamps == 2:
        for q in range(6):
            stamp(f"m{q}", 2)
            e(f"s_mov_b32 s{sCNT}, 0\ns_call_b64 s[{RET}:{RET+1}], L_att")
        stamp("m6", 2)
    O0, O1, O2, O3 = OO, OO + 16, OO + 32, OO + 48
    e(f"""
s_mov_b32 s{sCNT}, {0 if cfg.stamps == 2 else 6}
s_call_b64 s[{RET}:{RET+1}], L_att
s_mul_i32 s{sT1}, s{sU}, 4608
{MF} {vr(O3,16)}, {V1(3)}, {vr(PP+4,4)}, {vr(O3,16)}
s_add_u32 s{sT1}, s{sT1}, {L_PARK}
v_add_u32 v{vT0}, s{sT1}, v{vL16}
v_lshl_add_u32 v{vT1}, v{vLANE}, 2, s{sT1}
s_lshl_b32 s{sT0}, s{sU}, 2
s_add_u32 s{sT0}, s{sT0}, {L_FB + 16}
v_mov_b32 v{vWC}, s{sT0}
v_mov_b32 v{vWC+1}, 1
ds_write_b32 v{vWC}, v{vWC+1} offset:16
ds_write_b128 v{vT0}, {vr(O2,4)}
ds_write_b128 v{vT0}, {vr(O2+4,4)} offset:1024
ds_write_b32 v{vT1}, v{O2+8} offset:2048
s_xor_b32 s{sT0}, s{sU}, 1
s_mul_i32 s{sT1}, s{sT0}, 4608
ds_write_b128 v{vT0}, {vr(O3,4)} offset:2304
ds_write_b128 v{vT0}, {vr(O3+4,4)} offset:{2304+1024}
ds_write_b32 v{vT1}, v{O3+8} offset:{2304+2048}
ds_write_b32 v{vWC}, v{vWC+1}
s_add_u32 s{sT1}, s{sT1}, {L_PARK}
v_add_u32 v{vWO}, s{sT1}, v{vL16}
v_lshl_add_u32 v{vT1}, v{vLANE}, 2, s{sT1}
v_xor_b32 v{vWC}, 4, v{vWC}
s_and_b32 s{sT0}, s{sI}, 30
s_add_u32 s{sT0}, s{sT0}, s{sR}
s_lshl_b32 s{sT1}, s{sG}, 2
s_add_u32 s{sT1}, s{sT1}, s{sOFL}
s_lshl_b32 s{sOK}, s{sT0}, 5
s_add_u32 s{sOK}, s{sOK}, s{sT1}
s_lshl_b32 s{sFLG}, s{sOK}, 7
s_lshl_b32 s{sOK}, s{sOK}, 11
s_add_u32 s{sOK}, s{sOK}, {WS_O}
s_mov_b32 s{sSPIN}, {cfg.spin * 8}
""")
    stamp("att1")
    lds_wait(0, 1, a=vWC)
    e(f"""
ds_read_b128 {vr(S0,4)}, v{vWO}
ds_read_b128 {vr(S0+4,4)}, v{vWO} offset:1024
ds_read_b32 v{S0+8}, v{vT1} offset:2048
ds_read_b128 {vr(S1,4)}, v{vWO} offset:2304
ds_read_b128 {vr(S1+4,4)}, v{vWO} offset:{2304+1024}
ds_read_b32 v{S1+8}, v{vT1} offset:{2304+2048}
s_waitcnt lgkmcnt(0)
""")
    stamp("mrg")
    for j in range(8):
        e(f"v_add_f32 v{O0+j}, v{O0+j}, v{S0+j}")
        e(f"v_add_f32 v{O1+j}, v{O1+j}, v{S1+j}")
    e(f"""
v_add_f32 v{O0+8}, v{O0+8}, v{S0+8}
v_add_f32 v{O1+8}, v{O1+8}, v{S1+8}
v_mov_b32 v{vT0}, {hex(f2u(2.0**90))}
v_cmp_nlt_f32 vcc, v{O0+8}, v{vT0}
v_cmp_nlt_f32 s[{sT2}:{sT2+1}], v{O1+8}, v{vT0}
s_or_b64 vcc, vcc, s[{sT2}:{sT2+1}]
""")
    e("s_branch L_slow" if cfg.force_slow else "s_cbranch_vccnz L_slow")
    e(f"""
L_norm:
v_rcp_f32 v{S0}, v{O0+8}
v_rcp_f32 v{S0+2}, v{O1+8}
s_nop 0
""")
    for j in range(8):
        e(f"v_mul_f32 v{O0+j}, v{O0+j}, v{S0}")
        e(f"v_mul_f32 v{O1+j}, v{O1+j}, v{S0+2}")
    for j in range(4):
        e(f"v_cvt_pk_bf16_f32 v{CC+j}, v{O0+2*j}, v{O0+2*j+1}")
    for j in range(4):
        e(f"v_cvt_pk_bf16_f32 v{CC+4+j}, v{O1+2*j}, v{O1+2*j+1}")
    e(f"""
buffer_store_dwordx4 {vr(CC,4)}, v{vL16}, {srd(WS)}, s{sOK} offen sc1
buffer_store_dwordx4 {vr(CC+4,4)}, v{vL16}, {srd(WS)}, s{sOK} offen offset:1024 sc1
v_lshrrev_b32 v{vT0}, 3, v0               ; row
v_and_b32 v{vT1}, 7, v0
v_lshlrev_b32 v10, 10, v{vT0}
v_lshl_add_u32 v10, v{vT1}, 4, v10
s_lshl_b32 s{sT0}, s{sI}, 16
s_lshl_b32 s{sT1}, s{sG}, 7
s_add_u32 s{sKVO}, s{sT0}, s{sT1}
s_add_u32 s{sKVST}, s{sKVO}, 32768
buffer_load_dwordx4 {vr(48,4)}, v10, {srd(X)}, s{sKVO} offen
buffer_load_dwordx4 {vr(52,4)}, v10, {srd(X)}, s{sKVST} offen
v_lshlrev_b32 v{vT1}, 1, v{vT1}
v_xor_b32 v{vT1}, v{vT1}, v{vT0}
v_and_b32 v{vT1}, 15, v{vT1}
v_lshlrev_b32 v120, 8, v{vT0}
v_lshl_add_u32 v120, v{vT1}, 4, v120
v_add_u32 v120, {L_REG}, v120
v_xor_b32 v121, 16, v120
v_add_u32 v122, 0x10000, v120
v_add_u32 v123, 0x10000, v121
v_mov_b32 v3, {L_FB}
s_mov_b32 s{OUT}, s{pOUT}
s_mov_b32 s{OUT+1}, s{pOUT+1}
s_mov_b32 s{OUT+2}, 0x200000
s_mov_b32 s{OUT+3}, 0x00020000
s_waitcnt vmcnt(2)
""")
    flag_store(WS_OF, sFLG)
    if cfg.owarm:
        e(f"""
buffer_load_dwordx4 {vr(64,4)}, v{vL16}, {srd(WS)}, s{sOK} offen sc1
buffer_load_dwordx4 {vr(68,4)}, v{vL16}, {srd(WS)}, s{sOK} offen offset:1024 sc1
""")
    e("s_setprio 0")
    stamp("pub")
    TM, GA, XU, XA, vOA = 128, 16, 32, 48, 10
    def read_parts(TM, base):
        for p in range(4):
            a0, a1 = (120, 121) if p < 2 else (122, 123)
            o = (p & 1) * 32768 + base
            e(f"ds_read_b128 {vr(TM+p*8,4)}, v{a0} offset:{o}")
            e(f"ds_read_b128 {vr(TM+p*8+4,4)}, v{a1} offset:{o}")
    def sum_parts(TM):
        for j in range(0, 8, 2):
            e(f"v_pk_add_f32 {vr(TM+j,2)}, {vr(TM+j,2)}, {vr(TM+8+j,2)}")
            e(f"v_pk_add_f32 {vr(TM+16+j,2)}, {vr(TM+16+j,2)}, {vr(TM+24+j,2)}")
        for j in range(0, 8, 2):
            e(f"v_pk_add_f32 {vr(TM+j,2)}, {vr(TM+j,2)}, {vr(TM+16+j,2)}")
    lds_wait(4, 4)
    read_parts(TM, 0)
    e("s_waitcnt lgkmcnt(4)")
    read_parts(TM + 32, 8192)
    e(f"s_waitcnt vmcnt({3 if cfg.owarm else 1})")
    for j in range(8):
        e(f"v_lshlrev_b32 v{XU+2*j}, 16, v{XA+j}")
        e(f"v_and_b32 v{XU+2*j+1}, 0xffff0000, v{XA+j}")
    e("s_waitcnt lgkmcnt(8)")
    sum_parts(TM)
    e("s_waitcnt lgkmcnt(0)")
    sum_parts(TM + 32)
    src = lambda j: TM + (j >> 3) * 32 + (j & 7)
    for j in range(16):
        e(f"v_mul_f32 v{GA+j}, {hex(f2u(-math.log2(math.e)))}, v{src(j)}")
    for j in range(16):
        e(f"v_exp_f32 v{GA+j}, v{GA+j}")
    e("s_nop 0")
    for j in range(16):
        e(f"v_add_f32 v{GA+j}, 1.0, v{GA+j}")
    for j in range(16):
        e(f"v_rcp_f32 v{GA+j}, v{GA+j}")
    e("s_nop 0")
    for j in range(0, 16, 2):
        e(f"v_pk_mul_f32 {vr(GA+j,2)}, {vr(GA+j,2)}, {vr(src(j),2)}")
    stamp("gate")
    e("s_barrier")
    stamp("B1")
    read_parts(TM, 16384)
    e("s_waitcnt lgkmcnt(4)")
    read_parts(TM + 32, 16384 + 8192)
    for h in range(2):
        e(f"s_waitcnt lgkmcnt({8 if h == 0 else 0})")
        sum_parts(TM + h*32)
        for j in range(0, 8, 2):
            e(f"v_pk_fma_f32 {vr(TM+h*32+j,2)}, {vr(TM+h*32+j,2)}, {vr(GA+h*8+j,2)}, {vr(XU+h*8+j,2)}")
        for j in range(4):
            e(f"v_cvt_pk_bf16_f32 v{XA+h*4+j}, v{TM+h*32+2*j}, v{TM+h*32+2*j+1}")
        e(f"buffer_store_dwordx4 {vr(XA+h*4,4)}, v{vOA}, {srd(OUT)}, s{sKVO if h == 0 else sKVST} offen {['', 'sc1', 'nt', 'sc0 sc1'][cfg.ost]}")
    e(f"""
s_or_b32 s{sT1}, s2, s{sU}
s_cmp_lg_u32 s{sT1}, 0
s_cbranch_scc1 L_fin
""")
    flag_store(WS_EPOCH, sT1)
    e("s_branch L_fin")

    e("L_fwave:")
    rounds(1)
    vFB, vW2O, vW2T, vL4, vPB = 3, 4, 6, 8, 9
    e(f"""
v_mov_b32 v{vFB}, {L_FB}
v_sub_u32 v{vDUM}, 1, v{vLANE}
v_max_i32 v{vDUM}, 0, v{vDUM}
s_lshl_b32 s{sREG}, s{sU}, 15
s_add_u32 s{sREG}, s{sREG}, {L_REG}
v_mov_b32 v{vW2O}, v{vWP}
v_add_u32 v{vW2O+1}, {8192-1024}, v{vWP}
v_add_u32 v{vW2T}, s{sREG}, v124
v_xor_b32 v{vW2T+1}, 64, v{vW2T}
v_and_b32 v{vL4}, 31, v{vLANE}
v_lshlrev_b32 v{vL4}, 7, v{vL4}
""")
    def f_pub():
        wait_tag("kvst")
        kv_publish()
        stamp("kpub")
        if cfg.ft == 1 and cfg.ehold < 2: ftouch(True, False)
        if cfg.ehold == 3 and cfg.h8: lds_wait(8, 8)
    if not cfg.pub0: f_pub()
    if cfg.stouch:
        nw2, nwo, sh = (11, 4, 31) if cfg.stouch == 1 else (43, 16, 7)
        e(f"""
s_and_b32 s{sT0}, s{sI}, {sh}
s_lshl_b32 s{sT0}, s{sT0}, 2
s_add_u32 s{sT0}, s{sT0}, s{sU}
s_lshl_b32 s{sT2}, s{sG}, 7
s_mul_i32 s{sT1}, s{sT0}, {nw2*1024}
s_min_u32 s{sT1}, s{sT1}, {(1376-nw2)*1024}
s_add_u32 s{sT1}, s{sT1}, s{sT2}
s_add_u32 s88, s{pW2}, s{sT1}
s_addc_u32 s89, s{pW2+1}, 0
s_mul_i32 s{sT1}, s{sT0}, {nwo*1024}
s_add_u32 s{sT1}, s{sT1}, s{sT2}
s_add_u32 s100, s{pWO}, s{sT1}
s_addc_u32 s101, s{pWO+1}, 0
""")
        for k in range(nwo): e(f"s_load_dword s{pBX}, s[100:101], {k*1024}")
        for k in range(nw2): e(f"s_load_dword s{pBX}, s[88:89], {k*1024}")
    nfb = [0]
    def fbar():
        nfb[0] += 1
        if cfg.fbp: e("s_setprio 3")
        e(f"s_mov_b64 exec, 1\nds_add_u32 v{vFB}, v{vDUM}\ns_mov_b64 exec, -1")
        lds_wait(0, 4 * nfb[0])
        if cfg.fbp: e(f"s_setprio {cfg.pm}")
    e(f"s_setprio {cfg.pm}")
    ACCS = [16, 96, 80]
    WO = OUT
    e(f"""
s_mov_b32 s{W}, s{pW2}
s_mov_b32 s{W+1}, s{pW2+1}
s_mov_b32 s{W+2}, 0x158000
s_mov_b32 s{WO}, s{pWO}
s_mov_b32 s{WO+1}, s{pWO+1}
s_mov_b32 s{WO+2}, 0x80000
s_mov_b32 s{WO+3}, 0x00020000
s_lshl_b32 s{sT0}, s{sG}, 7
s_mul_i32 s{sSTART}, s{sU}, {352*1024}
s_add_u32 s{sSTART}, s{sSTART}, s{sT0}
s_lshl_b32 s{sCST}, s{sU}, 14
s_add_u32 s{sCST}, s{sCST}, s{sT0}
s_lshl_b32 s{sWR}, s{sU}, 11
s_mul_i32 s{sINC}, s{sU}, {22*2048}
""")
    def fill_parts(rho):
        out = []
        for sd, stride, lo in ((WO, 131072, 16384), (W, 352*1024, 0)):
            for h in range(2):
                out.append(f"""s_add_u32 m0, s{sWR}, {L_REG + rho*32768 + lo + h*8192}
s_add_u32 s{sT2}, s{sCST}, {rho*stride + h*65536}
buffer_load_dwordx4 v{vW2O}, {srd(sd)}, s{sT2} offen lds""")
                out.append(f"buffer_load_dwordx4 v{vW2O+1}, {srd(sd)}, s{sT2} offen offset:1024 lds")
        return out
    if cfg.e23 and not cfg.ehold:
        for m in (2, 3):
            for p in e_parts(m): e(p); op(("e", m))
    for n in range(8):
        wait_tag(("e", n))
        stamp(f"ew{n}", 3)
        fbar()
        stamp(f"ef{n}", 3)
        def rd(s):
            for t in range(3):
                b = WF + (s * 3 + t) * 4
                a = vWB + (ESLOT[n&3] >> 1)
                o = (ESLOT[n&3] & 1) * 32768 + s * 6144 + t * 128
                e(f"ds_read_b64_tr_b16 {vr(b,2)}, v{a} offset:{o}")
                e(f"ds_read_b64_tr_b16 {vr(b+2,2)}, v{a} offset:{o+1536}")
        if (cfg.ehold == 1 and n < 2) or (cfg.ehold == 2 and n < cfg.npre): dq = []
        elif n == 0 and cfg.ehold != 3: dq = [] if cfg.e23 else [(("e", m), p) for m in (2, 3) for p in e_parts(m)]
        elif n <= 4: dq = [(("e", n + 3), p) for p in e_parts(n + 3)]
        else: dq = [("f", p) for p in fill_parts(ESLOT[(n - 1) & 3])]
        if cfg.pub0 and n == 0: dq = []
        if cfg.pub0 and n == 1: dq = [(("e", 3), p) for p in e_parts(3)] + dq
        nq = len(dq)
        rd(0); rd(1)
        for s in range(4):
            if s + 2 < 4:
                e("s_waitcnt lgkmcnt(6)")
                rd(s + 2)
            e(f"s_waitcnt lgkmcnt({6 * min(2, 3 - s)})")
            for t in range(3):
                c = "0" if (n == 0 and s == 0) else vr(ACCS[t], 16)
                e(f"{MF} {vr(ACCS[t],16)}, {vr(WF+(s*3+t)*4,4)}, {vr(XF+n*16+s*4,4)}, {c}")
                idx = s * 3 + t
                while dq and (nq - len(dq)) * 12 <= idx * nq:
                    tag, p = dq.pop(0); e(p); op(tag)
        assert not dq
        if cfg.pub0 and n == 0: f_pub()
        if cfg.ehold == 2 and n == cfg.npre - 1:
            lds_wait(cfg.hw, 1 if cfg.hw == 12 else 8)
            if cfg.edel: e(f"s_sleep {cfg.edel}")
            for m in range(cfg.npre, cfg.npre + 3):
                for p in e_parts(m): e(p); op(("e", m))
            if cfg.ft == 1: ftouch(True, False)
        if cfg.ehold == 3 and n == cfg.tn:
            lds_wait(12, 1)
            ftouch(True, False)
        if cfg.ehold == 1 and n == 1:
            lds_wait(12, 1)
            e(f"s_sleep {cfg.edel}")
            if cfg.ft == 9: ftouch(True, False)
            for m in (2, 3, 4):
                for p in e_parts(m): e(p); op(("e", m))
        stamp(f"em{n}", 3)
    e(f"s_setprio {cfg.pv}\ns_nop 10")
    for t in range(3):
        h_store(WF + 8*t, ACCS[t])
        e(f"s_add_u32 s{sHST}, s{sHST}, 8192")
    e(f"s_setprio {cfg.pm}")
    stamp("ffn1")
    fbar()
    G, W2F, HF, NWIN, WOF = 16, 80, 104, 11, 192
    def dma2(sd, sbase, k, slot, tag):
        e(f"""
s_add_u32 m0, s{sREG}, {slot * 2048}
s_add_u32 s{sT0}, s{sbase}, {k*16*1024}
buffer_load_dwordx4 v{vW2O}, {srd(sd)}, s{sT0} offen lds
buffer_load_dwordx4 v{vW2O+1}, {srd(sd)}, s{sT0} offen offset:1024 lds
""")
        op(tag, 2)
    def h_issue(k):
        hb = HF + (k % NWIN) * 8
        e(f"""
s_add_u32 s{sT0}, s{sINC}, {k*2048}
buffer_load_dwordx4 {vr(hb,4)}, v{vL16}, {srd(H)}, s{sT0} offen sc1
buffer_load_dwordx4 {vr(hb+4,4)}, v{vL16}, {srd(H)}, s{sT0} offen offset:1024 sc1
""")
        op(("h", k), 2)
    def f2_reads(k):
        slot = (k % 16) * 2048
        b = W2F + (k % 3) * 8
        for ch in range(2):
            e(f"ds_read_b64_tr_b16 {vr(b+ch*4,2)}, v{vW2T+ch} offset:{slot}")
            e(f"ds_read_b64_tr_b16 {vr(b+ch*4+2,2)}, v{vW2T+ch} offset:{slot+1024}")
    wait_tag("hst")
    flag_store(WS_HF, sFLG)
    stamp("hpub", 3)
    for q, p in enumerate(fill_parts(ESLOT[3])):
        e(p)
        if q & 1: e(f"s_waitcnt vmcnt({cfg.pace})")
    e("s_waitcnt vmcnt(0)")
    fbar()
    stamp("w8", 3)
    for s_ in range(8):
        for ch in range(2):
            b = WOF + (s_ * 2 + ch) * 4
            e(f"ds_read_b64_tr_b16 {vr(b,2)}, v{vW2T+ch} offset:{16384 + s_*2048}")
            e(f"ds_read_b64_tr_b16 {vr(b+2,2)}, v{vW2T+ch} offset:{16384 + s_*2048 + 1024}")
        e("s_waitcnt lgkmcnt(8)")
    e("s_waitcnt lgkmcnt(0)")
    stamp("wr", 3)
    for k in range(8, 16):
        dma2(W, sSTART, k, k, "w")
        e(f"s_waitcnt vmcnt({cfg.pace})")
    e(f"s_lshl_b32 s{sRD}, s{sI}, 12\ns_add_u32 s{sRD}, s{sRD}, {WS_HF}")
    stamp("w16", 3)
    poll1(W2F, vL4, sRD)
    stamp("hpoll")
    e(f"s_setprio {cfg.pm2}")
    st["ops"] = []
    NK = 22
    nh = 0
    def h_upto(n):
        nonlocal nh
        while nh < min(n, NK):
            h_issue(nh); nh += 1
    h_upto(cfg.hlead)
    f2_reads(0); f2_reads(1)
    for k in range(NK):
        if k == cfg.early:
            for n in range(nh + 1, k + NWIN + 1):
                h_upto(n); e(f"s_waitcnt vmcnt({cfg.pace})")
            e(f"""
s_lshl_b32 s{sOK}, s{sI}, 16
s_lshl_b32 s{sT1}, s{sU}, 14
s_add_u32 s{sOK}, s{sOK}, s{sT1}
s_add_u32 s{sOK}, s{sOK}, {WS_O}
s_and_b32 s{sT2}, s{sG}, {1 if cfg.orot else 0}
s_lshl_b32 s{sT1}, s{sT2}, 10
s_add_u32 s{sOK}, s{sOK}, s{sT1}
s_lshl_b32 s{sDST}, s{sT2}, 13
s_lshl_b32 s{sRD}, s{sI}, 12
s_lshl_b32 s{sT1}, s{sU}, 10
s_add_u32 s{sRD}, s{sRD}, s{sT1}
s_add_u32 s{sRD}, s{sRD}, {WS_OF}
v_and_b32 v{vL4}, 0x380, v{vL4}
v_and_b32 v{vT0}, 31, v{vLANE}
v_lshrrev_b32 v{vT1}, 5, v{vLANE}
v_xor_b32 v{vT1}, v{vT1}, v{vLANE}
v_and_b32 v{vT1}, 15, v{vT1}
v_lshlrev_b32 v{vPB}, 8, v{vT0}
v_lshl_add_u32 v{vPB}, v{vT1}, 4, v{vPB}
v_add_u32 v{vPB}, s{sREG}, v{vPB}
s_lshl_b32 s{sT0}, s{sU}, 2
v_add_u32 v10, s{sT0}, v{vFB}
""")
            stamp("fe")
            lds_wait(32, 1, a=10, sl=4)
            e("s_setprio 1")
        h_upto(k + cfg.hlead + 1 if k < cfg.early else k + NWIN)
        if 1 <= k <= 6:
            dma2(W, sSTART, k + 15, k - 1, ("w", k + 15))
        if k + 2 < NK:
            wait_tag(("w", k + 2))
            f2_reads(k + 2)
        wait_tag(("h", k))
        e(f"s_waitcnt lgkmcnt({4 * min(2, NK - 1 - k)})")
        b = W2F + (k % 3) * 8
        hb = HF + (k % NWIN) * 8
        for r in range(2):
            for ch in range(2):
                g = G + (r * 2 + ch) * 16
                c = "0" if k == 0 else vr(g, 16)
                e(f"{MF} {vr(g,16)}, {vr(b+ch*4,4)}, {vr(hb+r*4,4)}, {c}")
    stamp("f22")
    AD = 80
    e("s_setprio 3")
    e(f"buffer_load_dword v{vONE}, v{vL4}, {srd(WS)}, s{sRD} offen sc1" if cfg.opre else f"v_mov_b32 v{vONE}, 0")
    for q in range(8):
        e(f"v_xor_b32 v{AD+q}, {q << 5}, v{vPB}")
    e("s_nop 1")
    for q in range(8):
        for r in range(2):
            e(f"ds_write_b128 v{AD+q}, {vr(G+r*32+q*4,4)} offset:{r*8192}")
    for q in range(8):
        e(f"v_add_u32 v{AD+q}, s{sDST}, v{AD+q}")
    l = e.lab()
    e(f"""
s_waitcnt lgkmcnt(0)
s_mov_b64 exec, 1
ds_add_u32 v{vFB}, v{vDUM} offset:4
s_mov_b64 exec, -1
s_waitcnt vmcnt(0)
{f"v_cmp_ne_u32 vcc, s{sTAG}, v{vONE}" if cfg.opre else ""}
{f"s_cbranch_vccz {l}" if cfg.opre else ""}
""")
    poll1(vONE, vL4, sRD, cfg.osl)
    e(f"{l}:")
    stamp("opoll")
    OF, SA = 128, 16
    for h in range(2):
        e(f"s_mov_b32 s{sT0}, s{sOK}" if h == 0 else f"s_xor_b32 s{sT0}, s{sOK}, 1024")
        for s_ in range(8):
            if s_ and s_ % 2 == 0:
                e(f"s_add_u32 s{sT0}, s{sT0}, 4096")
            e(f"buffer_load_dwordx4 {vr(OF+(h*8+s_)*4,4)}, v{vL16}, {srd(WS)}, s{sT0} offen offset:{(s_&1)*2048} sc1")
    for h in range(2):
        for s_ in range(8):
            e(f"s_waitcnt vmcnt({15 - h*8 - s_})")
            for ch in range(2):
                a = SA + h*32 + ch*16
                c = "0" if s_ == 0 else vr(a, 16)
                e(f"{MF} {vr(a,16)}, {vr(WOF+(s_*2+ch)*4,4)}, {vr(OF+(h*8+s_)*4,4)}, {c}")
            if h == 1 and s_ >= 4:
                for q in (2*(s_-4), 2*(s_-4)+1):
                    e(f"ds_write_b128 v{AD+q}, {vr(SA+q*4,4)} offset:16384")
    for q in range(8):
        e(f"v_xor_b32 v{AD+q}, 0x2000, v{AD+q}")
    e("s_nop 1")
    for q in range(8):
        e(f"ds_write_b128 v{AD+q}, {vr(SA+32+q*4,4)} offset:16384")
    e("s_waitcnt lgkmcnt(0)")
    stamp("omf")
    e("s_barrier")
    e("L_fin:")
    if cfg.stamps:
        e("s_waitcnt vmcnt(0)")
        stamp("end")
        e(f"""
s_memrealtime s[88:89]
s_waitcnt lgkmcnt(0)
v_writelane_b32 v15, s86, 62
v_writelane_b32 v15, s88, 63
s_lshl_b32 s{sT0}, s2, 3
s_add_u32 s{sT0}, s{sT0}, s{sWV}
s_lshl_b32 s{sT0}, s{sT0}, 8
s_add_u32 s{sT0}, s{sT0}, 0x8000000
v_lshlrev_b32 v{vT0}, 2, v{vLANE}
buffer_store_dword v15, v{vT0}, {srd(WS)}, s{sT0} offen
""")
    e("L_exit:\ns_endpgm")

    e(".p2align 6\nL_att:")
    def ex(S, a, b):
        for j in range(a, b):
            e(f"v_exp_f32 v{S+j}, v{S+j}" if not (cfg.xp & 8 and j & 1) else "s_nop 1")
    def cv(S, a, b):
        for j in range(a, b):
            e(f"v_cvt_pk_bf16_f32 v{PP+j}, v{S+2*j}, v{S+2*j+1}")
    K = lambda bb: vr(KV + bb*12, 4)
    V0 = lambda bb: vr(KV + bb*12 + 4, 4)
    for s in range(4):
        b = s; pb = (s - 1) % 4; nb = (s + 1) % 4
        for t in range(4):
            S, Sn = (S0, S1) if t % 2 == 0 else (S1, S0)
            op_, vprev = (OO + 48, V1(pb)) if t == 0 else (OO + (t-1)*16, V1(b))
            tn = (t + 1) % 4
            ex(S, 0, 4)
            e(f"{MF} {vr(op_,16)}, {vprev}, {vr(PP+4,4)}, {vr(op_,16)}")
            if t == 0: kv_loads(pb, mask=cfg.vm)
            if t == 1 and s == 3: e(f"s_sub_u32 s{sCNT}, s{sCNT}, 1")
            ex(S, 4, 8)
            cv(S, 0, 4)
            if t == 3: e("s_waitcnt vmcnt(6)")
            e(f"{MF} {vr(Sn,16)}, {K(nb) if t == 3 else K(b)}, {vr(QQ+tn*4,4)}, {vr(CC+tn*16,16)}")
            ex(S, 8, 12)
            e(f"{MF} {vr(OO+t*16,16)}, {V0(b)}, {vr(PP,4)}, {vr(OO+t*16,16)}")
            ex(S, 12, 16)
            cv(S, 4, 8)
    e(f"s_cbranch_scc0 L_att\ns_setpc_b64 s[{RET}:{RET+1}]")

    e(f"""
L_slow:
s_waitcnt vmcnt(0)
s_mov_b32 s{sKVO}, 0
s_mov_b32 s{sCNT}, 64
v_mov_b32 v{vT0}, 0xff800000
v_mov_b32 v{vT1}, 0xff800000
L_slow_loop:
s_add_u32 s{KB}, s{KD}, s{sKVO}
s_addc_u32 s{KB+1}, s{KD+1}, 0
global_load_dwordx4 {vr(KV,4)}, v{vL16}, s[{KB}:{KB+1}] offset:-4096 sc1
s_add_u32 s{sKVO}, s{sKVO}, 2048
s_and_b32 s{sT0}, s{sKVO}, 8192
s_add_u32 s{sKVO}, s{sKVO}, s{sT0}
s_waitcnt vmcnt(0)
{MF} {vr(S0,16)}, {vr(KV,4)}, {vr(QQ,4)}, 0
{MF} {vr(S1,16)}, {vr(KV,4)}, {vr(QQ+4,4)}, 0
s_nop 15
s_nop 3
""")
    maxtree(vT0, S0, init=True)
    maxtree(vT1, S1, init=True)
    e(f"""
s_sub_u32 s{sCNT}, s{sCNT}, 1
s_cmp_lg_u32 s{sCNT}, 0
s_cbranch_scc1 L_slow_loop
s_mov_b32 s{sKVO}, 0
s_mov_b64 s[{KB}:{KB+1}], s[{KD}:{KD+1}]
s_mov_b32 s{sSTR}, 16384
{f"s_mov_b64 s[{sN}:{sN+1}], -1" if cfg.vm else ""}
s_mov_b32 s{sCNT}, 15
""")
    for j in range(4):
        e(f"v_mov_b32 v{KV+3*12+8+j}, 0\nv_mov_b32 v{PP+4+j}, 0")
    for b in range(3):
        kv_loads(b)
    for j in range(0, 32, 2):
        e(f"v_mov_b64 {vr(OO+j,2)}, 0")
    setc(CC, CC + 16)
    e(f"""
s_waitcnt vmcnt(6)
{MF} {vr(S0,16)}, {vr(KV,4)}, {vr(QQ,4)}, {vr(CC,16)}
s_nop 11
s_call_b64 s[{RET}:{RET+1}], L_att
s_nop 15
s_branch L_norm
L_codeend:
""")

    hdr = f"""; Fused kernel: LayerNorm -> QKV / FFN GEMMs -> attention -> out projection + gate (one launch, 256 workgroups).
; Kernarg: A_x, A_wqkv, A_wo, B_x (unused), B_w1, B_w2, out, debug, ws (8 bytes each).
{"; stamps=" + ("RT," if cfg.rt else "") + ",".join(names) if names else ";"}
; @launch grid=(256,1,1) block=(512,1,1) lds=163840
.amdgcn_target "amdgcn-amd-amdhsa--gfx950"
.text
.globl {cfg.kname}
.p2align 8
.type {cfg.kname},@function
{cfg.kname}:
"""
    ftr = f""".section .rodata,"a"
.p2align 6
.amdhsa_kernel {cfg.kname}
  .amdhsa_next_free_vgpr 256
  .amdhsa_next_free_sgpr 102
  .amdhsa_accum_offset 256
  .amdhsa_group_segment_fixed_size 0
  .amdhsa_kernarg_size 72
  .amdhsa_user_sgpr_count 2
  .amdhsa_user_sgpr_kernarg_segment_ptr 1
  .amdhsa_system_sgpr_workgroup_id_x 1
.end_amdhsa_kernel
"""
    return hdr + e.text() + ftr

if __name__ == "__main__":
    cfg = Cfg()
    out = f"cdna_kernels/{NAME}.s"
    for a in sys.argv[1:]:
        k, v = a.split("=")
        if k == "out":
            out = v
        else:
            assert hasattr(cfg, k), k
            setattr(cfg, k, int(v))
    open(out, "w").write(gen(cfg))
    print("wrote", out)
```

```python
import sys, struct, math

NAME = "recurrent_scan__softmax_full_mha__dense_activation_relu__prompt"

def f2u(x):
    return struct.unpack("<I", struct.pack("<f", x))[0]

class Cfg:
    stamps = 0
    rt = 0
    kname = NAME + "_kernel"
    force_slow = 0
    spin = 200000
    ctouch = 1
    lnsplit = 4
    nolagA = 1
    kvrot = 1
    orot = 1
    fl = 32
    qpub = 12
    epace = 3
    U = 1
    kdel = 18
    ehold = 2
    hw = 12
    e0it = 5
    npre = 3
    supF = 3
    ut = 0
    u0pos = 4
    g7 = 0
    pf = 0
    sf = 0
    opre = 0
    osl = 0
    dlate = 1
    dbg_pad = 0
    dbg_at = 0
    xmap = 0
    qsplit = 4
    a2pre = 0
    supos = 0
    ost = 1
    fastpro = 1
    xp = 0
    ft = 1
    ft1 = 4
    epre = 1
    nopre = 0
    edel = 0
    owarm = 0
    w2 = 0
    ldpos = 0
    pt = 0
    vm = 0
    pshift = 21
    kvx = 0
    frot = 0
    e23 = 1
    fbp = 1
    pm2 = 0
    ksleep = 4
    NB = 4
    early = 6
    ft2 = 0
    stouch = 0
    vt = 0
    vtpos = 2
    pace = 2
    dpace = 4
    hlead = 3
    ddelay = 1
    mearly = 0
    dearly = 1
    pm = 0
    pv = 0
    psleep = 4

WS_EPOCH = 0x0
WS_KVF = 0x8000
WS_HF = 0x20000
WS_OF = 0x40000
WS_KV = 0x100000
WS_H = 0x900000
H_BLK = 86 * 2048
WS_O = 0xF00000
WS_SIZE = 0x1100000

L_QX = 0
L_KX = 8192
L_FB = 12288
L_REG = 32768
XHI = L_REG + 3 * 32768

class E:
    def __init__(self):
        self.L = []
        self.nlab = 0
    def __call__(self, s):
        for line in s.strip("\n").split("\n"):
            line = line.rstrip()
            if not line.strip():
                continue
            if line.strip().endswith(":") and " " not in line.strip():
                self.L.append(line.strip())
            else:
                self.L.append("    " + line.strip())
    def lab(self, p="L"):
        self.nlab += 1
        return f"{p}_{self.nlab}"
    def text(self):
        return "\n".join(self.L) + "\n"

def vr(a, n):
    return f"v[{a}:{a+n-1}]"
MF = "v_mfma_f32_32x32x16_bf16"

def gen(cfg):
    e = E()
    NB = cfg.NB
    names = []
    def stamp(name, lvl=1):
        if cfg.stamps and (lvl == 1 or cfg.stamps == lvl):
            name = str(name)
            if name not in names: names.append(name)
            e("s_memrealtime s[84:85]\ns_waitcnt lgkmcnt(0)" if cfg.rt else "s_memtime s[84:85]\ns_waitcnt lgkmcnt(0)\ns_sub_u32 s84, s84, s82")
            e(f"v_writelane_b32 v15, s84, {names.index(name)}")
    X, W, WS, H, OUT = 4, 8, 12, 16, 20
    sWV, sI, sG, sROT, sTAG, sFLG = 24, 25, 26, 27, 28, 29
    sRD, sWR, sR, sSTART, sINC, sKVF = 30, 31, 32, 33, 34, 35
    sCST, sDST, sOK, sWRD = 36, 37, 38, 39
    sOFL = 44
    sN, sP0, sTH, sW2B, sHB2, sWX = 40, 41, 42, 43, 45, 47
    sONES = 46
    sVMASK = 50
    sT0, sT1, sT2, sT3 = 52, 53, 54, 55
    sKVST, sHST, sROLE, sCNT, sKVO, sREG = 56, 57, 58, 59, 60, 61
    sSPIN, sU = 62, 63
    pX, pWQKV, pWO, pBX, pW1, pW2, pOUT, pDBG, pWS = 64, 66, 68, 70, 72, 74, 76, 78, 80
    sPJ = 90
    RET = 94
    TS = 96
    KD = H
    srd = lambda b: f"s[{b}:{b+3}]"
    vLANE, vL16, vVO, vWO, vWC, vWT, vVS, vDUM, vONE, vT0, vT1 = 1, 2, 3, 4, 6, 8, 10, 11, 12, 13, 14
    vS1a, vS1b, vS2a, vS2b, vRS, vNM, vXW, vWROW, vXO = 16, 17, 18, 19, 20, 22, 24, 26, 27
    ACC, WF, ACC2 = 16, 32, 96
    PK = 96
    vXA, vW4, vWB, vWP = 112, 116, 120, 127
    XF = 128
    XRAW, XUN = 128, 160
    QQ, PP = 16, 240
    S0, S1, CC, OO = 32, 48, 64, 128
    KV = 192
    sSTR, sQS, QB = 42, 43, 40
    L_PARK = 13312

    st = {"ops": []}
    def op(tag, n=1): st["ops"].extend([tag] * n)
    def wait_tag(tag):
        ops = st["ops"]
        idx = [i for i, t in enumerate(ops) if t == tag]
        if idx:
            e(f"s_waitcnt vmcnt({len(ops) - 1 - max(idx)})")
    def flag_store(base, soff):
        e(f"""
v_mov_b32 v{vT0}, s{sTAG}
v_lshrrev_b32 v{vT1}, 2, v{vL16}
v_add_u32 v{vT1}, {base}, v{vT1}
s_mov_b32 exec_lo, {hex((1 << cfg.fl) - 1)}
s_mov_b32 exec_hi, 0
buffer_store_dword v{vT0}, v{vT1}, {srd(WS)}, s{soff} offen {['sc1', 'sc0 sc1'][cfg.sf]}
s_mov_b64 exec, -1
""")
    def poll1(vdst, vaddr, soff, first=0):
        lp, lpd = e.lab("LP"), e.lab("LPD")
        e(f"""
s_mov_b32 s{sSPIN}, {cfg.spin}
{lp}:
{f"s_sleep {first}" if first else ""}
buffer_load_dword v{vdst}, v{vaddr}, {srd(WS)}, s{soff} offen {['sc1', 'sc0 sc1', 'sc1 nt', 'sc0 sc1 nt'][cfg.pf]}
s_waitcnt vmcnt(0)
v_cmp_ne_u32 vcc, s{sTAG}, v{vdst}
s_cbranch_vccz {lpd}
{f's_sleep {cfg.psleep}' if cfg.psleep and not first else ''}
s_sub_u32 s{sSPIN}, s{sSPIN}, 1
s_cbranch_scc0 {lp}
{lpd}:
""")

    def lds_wait(off, n, a=3, sl=1):
        lp, lpd = e.lab("LW"), e.lab("LWD")
        e(f"""
s_mov_b32 s{sSPIN}, {cfg.spin * 8}
{lp}:
ds_read_b32 v{vT0}, v{a} offset:{off}
s_waitcnt lgkmcnt(0)
v_cmp_le_u32 vcc, {n}, v{vT0}
s_cbranch_vccnz {lpd}
s_sleep {sl}
s_sub_u32 s{sSPIN}, s{sSPIN}, 1
s_cbranch_scc0 {lp}
{lpd}:
""")
    e(f"""
s_load_dwordx2 s[{X}:{X+1}], s[0:1], 0
s_cmp_ge_u32 s2, 256
s_cbranch_scc1 L_exit
s_setprio 3
s_load_dwordx16 s[64:79], s[0:1], 0
s_load_dwordx2 s[80:81], s[0:1], 64
""")
    if cfg.stamps:
        e("s_memtime s[82:83]\ns_memrealtime s[86:87]\nv_mov_b32 v15, 0")
    e(f"""
s_lshl_b32 s{sT2}, s2, {[3, 4, 2][cfg.xmap]}
s_and_b32 s{sT2}, s{sT2}, {[24, 16, 28][cfg.xmap]}
s_bfe_u32 s{sT3}, s2, {['0x30003', '0x40003', '0x20003'][cfg.xmap]}
s_or_b32 s{sI}, s{sT2}, s{sT3}
s_and_b32 s{sT2}, s2, {[4, 6, 0][cfg.xmap]}
s_lshr_b32 s{sT3}, s2, {[6, 7, 5][cfg.xmap]}
s_or_b32 s{sG}, s{sT2}, s{sT3}
s_add_u32 s{sROT}, s{sI}, s{sG}
s_and_b32 s{sPJ}, s{sROT}, 3
s_add_u32 s{sROT}, s{sROT}, 1
s_and_b32 s{sPJ+1}, s{sROT}, 3
v_lshrrev_b32 v{vT0}, 3, v0
v_and_b32 v{vT1}, 7, v0
v_lshlrev_b32 v{vXO}, 4, v{vT1}
v_lshl_add_u32 v{vXO}, v{vT0}, 10, v{vXO}
s_lshl_b32 s{sT0}, s{sI}, 16
v_add_u32 v{vXO}, s{sT0}, v{vXO}
s_mov_b32 s{X+2}, 0x200000
s_mov_b32 s{X+3}, 0x00020000
s_waitcnt lgkmcnt(0)
""")
    def x_loads(half):
        for j in range(2*half, 2*half+2):
            e(f"s_lshl_b32 s{sT2}, s{sPJ+j}, 8")
            e(f"buffer_load_dwordx4 {vr(XRAW+j*8,4)}, v{vXO}, {srd(X)}, s{sT2} offen")
            e(f"buffer_load_dwordx4 {vr(XRAW+j*8+4,4)}, v{vXO}, {srd(X)}, s{sT2} offen offset:128")
            op(("x", 2*j)); op(("x", 2*j+1))
        e(f"s_setprio {2 - 2*half}")
    def vtouch():
        if not cfg.vt: return
        e(f"""
s_lshl_b32 s3, s2, 3
s_add_u32 s3, s3, s{sWV}
s_mul_i32 s{sT2}, s3, 768
v_lshl_add_u32 v30, v{vLANE}, 7, s{sT2}
v_min_u32 v31, {0x158000 - 4}, v30
s_lshl_b32 s3, s3, 8
v_lshl_add_u32 v28, v{vLANE}, 7, s3
s_mov_b64 exec, 63
""")
        if cfg.vt & 2:
            e(f"global_load_dword v29, v30, s[{pWQKV}:{pWQKV+1}]\nglobal_load_dword v29, v31, s[{pW1}:{pW1+1}]"); op("t", 2)
        if cfg.vt & 1:
            e(f"global_load_dword v29, v31, s[{pW2}:{pW2+1}]\ns_mov_b64 exec, 3\nglobal_load_dword v29, v28, s[{pWO}:{pWO+1}]"); op("t", 2)
        e("s_mov_b64 exec, -1")
    def ftouch(w2, w1):
        e(f"""
s_lshl_b32 s3, s2, 2
s_add_u32 s3, s3, s{sU}
s_mul_i32 s{sT0}, s3, 1408
v_lshl_add_u32 v125, v{vLANE}, 7, s{sT0}
v_min_u32 v125, {0x158000 - 4}, v125
s_mov_b64 exec, 0x7ff
""")
        if w1:
            e(f"global_load_dword v126, v125, s[{pW1}:{pW1+1}]"); op("t")
        if w2:
            e(f"""
global_load_dword v126, v125, s[{pW2}:{pW2+1}]
s_lshl_b32 s3, s3, 9
v_lshl_add_u32 v125, v{vLANE}, 7, s3
s_mov_b64 exec, 15
global_load_dword v126, v125, s[{pWO}:{pWO+1}]
"""); op("t", 2)
        e("s_mov_b64 exec, -1")
    def ptouch():
        e(f"""
v_lshlrev_b32 v28, {cfg.pshift}, v{vLANE}
v_add_u32 v28, 0x3000, v28
v_min_u32 v28, {WS_SIZE - 4}, v28
s_lshl_b32 s3, s2, 13
v_mov_b32 v30, s3
s_mov_b64 exec, {hex((1 << min(64, (WS_SIZE >> cfg.pshift) + 1)) - 1) if (WS_SIZE >> cfg.pshift) + 1 < 31 else -1}
global_load_dword v29, v28, s[{pWS}:{pWS+1}] sc1
s_mov_b64 exec, 1
global_load_dword v29, v30, s[{pOUT}:{pOUT+1}] sc1
s_mov_b64 exec, -1
""")
        op("t", 2)
    x_loads(0)
    e(f"""
s_load_dword s{sTAG}, s[{pWS}:{pWS+1}], {WS_EPOCH}
s_getpc_b64 s[88:89]
L_pc:
s_bfe_u32 s3, s2, 0x30003
s_mul_i32 s3, s3, 3
v_lshrrev_b32 v30, 6, v0
v_mul_u32_u24 v28, 24, v30
v_and_b32 v29, 3, v0
v_add3_u32 v28, v28, v29, s3
v_lshlrev_b32 v28, 7, v28
v_min_u32 v28, L_codeend-L_pc-4, v28
s_mov_b64 exec, 7
global_load_dword v29, v28, s[88:89]
s_mov_b64 exec, -1
v_readfirstlane_b32 s{sWV}, v30
v_and_b32 v{vLANE}, 63, v0
v_lshlrev_b32 v{vL16}, 4, v{vLANE}
s_xor_b32 s{sPJ+2}, s{sPJ}, 2
s_xor_b32 s{sPJ+3}, s{sPJ+1}, 2
""")
    op("ct")
    if cfg.pt == 1: ptouch()
    if cfg.vtpos == 0: vtouch()
    e(f"""
s_mov_b32 s{W}, s{pWQKV}
s_mov_b32 s{W+1}, s{pWQKV+1}
s_mov_b32 s{W+2}, 0x180000
s_mov_b32 s{W+3}, 0x00020000
v_bfe_u32 v{vXW}, v0, 4, 3
v_xor_b32 v{vXW}, v{vXW}, v{vT1}
v_lshlrev_b32 v{vXW}, 4, v{vXW}
v_lshl_add_u32 v{vXW}, v{vT0}, 7, v{vXW}
v_add_u32 v{vXW+1}, {XHI}, v{vXW}
v_lshrrev_b32 v{vWROW}, 3, v{vLANE}
v_bfe_u32 v{vT0}, v{vLANE}, 4, 1
v_lshlrev_b32 v{vT0}, 2, v{vT0}
v_xor_b32 v{vWP}, v{vT1}, v{vT0}
v_lshlrev_b32 v{vWP}, 4, v{vWP}
v_mul_u32_u24 v{vWO}, 3072, v{vWROW}
v_add_u32 v{vWO}, v{vWO}, v{vWP}
v_add_u32 v{vWO+1}, {8*3072-1024}, v{vWO}
v_lshl_add_u32 v{vWP}, v{vWROW}, 10, v{vWP}
s_lshr_b32 s{sROLE}, s{sWV}, 2
s_and_b32 s{sU}, s{sWV}, 3
s_and_b32 s{sR}, s{sWV}, 1
s_mul_i32 s{sSTART}, s{sU}, {16*3072}
s_lshl_b32 s{sT2}, s{sG}, 7
s_add_u32 s{sSTART}, s{sSTART}, s{sT2}
s_mul_i32 s{sT3}, s{sT2}, 3
s_mul_i32 s{sDST}, s{sU}, {16*2752}
s_add_u32 s{sDST}, s{sDST}, s{sT3}
s_mul_i32 s{sCST}, s{sWV}, {8*3072}
s_add_u32 s{sCST}, s{sCST}, s{sT2}
s_mov_b32 s{TS}, s{pW1}
s_mov_b32 s{TS+1}, s{pW1+1}
s_mov_b32 s{TS+2}, 0x158000
s_mov_b32 s{TS+3}, 0x00020000
s_mul_i32 s{sWR}, s{sWV}, 3072
s_add_u32 s{sWR}, s{sWR}, {L_REG}
s_mul_i32 s{sWRD}, s{sU}, 6144
s_add_u32 s{sWRD}, s{sWRD}, {L_REG}
s_lshl_b32 s{sINC}, s{sROLE}, 10
s_add_u32 s{sINC}, s{sINC}, s{sSTART}
s_add_u32 s{sINC}, s{sINC}, 1024
s_mov_b32 s{sONES}, 0x3f803f80
s_mov_b32 s{WS}, s{pWS}
s_mov_b32 s{WS+1}, s{pWS+1}
s_mov_b32 s{WS+2}, {0x10000000 if cfg.stamps else WS_SIZE}
s_mov_b32 s{WS+3}, 0x00020000
s_bfe_u32 s{sT1}, s{sWV}, 0x10001         ; ct
s_lshl_b32 s{sT3}, s{sG}, 1
s_add_u32 s{sT3}, s{sT3}, s{sT1}
s_lshl_b32 s{sKVST}, s{sT3}, 19
s_lshr_b32 s{sT3}, s{sI}, 1
s_lshl_b32 s{sT3}, s{sT3}, 2
s_and_b32 s{sT0}, s{sI}, 1
s_add_u32 s{sT3}, s{sT3}, s{sT0}
s_lshl_b32 s{sT3}, s{sT3}, 1
s_add_u32 s{sT3}, s{sT3}, s{sR}
s_lshl_b32 s{sT3}, s{sT3}, 11
s_add_u32 s{sKVST}, s{sKVST}, s{sT3}
s_add_u32 s{sKVST}, s{sKVST}, {WS_KV}
s_mul_i32 s{sT3}, s{sG}, 6
s_add_u32 s{sT3}, s{sT3}, s{sT1}
s_lshl_b32 s{sHST}, s{sT3}, 12
s_lshl_b32 s{sT3}, s{sR}, 10
s_add_u32 s{sHST}, s{sHST}, s{sT3}
s_lshl_b32 s{sRD}, s{sG}, 12
s_lshl_b32 s{sT3}, s{sI}, 7
s_add_u32 s{sKVF}, s{sRD}, s{sT3}
s_add_u32 s{sRD}, s{sRD}, {WS_KVF}
s_lshl_b32 s{sT0}, s{sI}, 12
s_lshl_b32 s{sT3}, s{sU}, 7
s_add_u32 s{sT0}, s{sT0}, s{sT3}
s_lshl_b32 s{sT3}, s{sG}, 9
s_add_u32 s{sFLG}, s{sT0}, s{sT3}
v_and_b32 v{vT0}, 31, v{vLANE}
v_bfe_u32 v{vT1}, v{vLANE}, 1, 3
v_lshrrev_b32 v{vONE}, 5, v{vLANE}        ; hh
v_xor_b32 v{vXA}, v{vONE}, v{vT1}
v_lshlrev_b32 v{vXA}, 4, v{vXA}
v_lshl_add_u32 v{vXA}, v{vT0}, 7, v{vXA}
s_lshl_b32 s{sT3}, s{sR}, 12
s_add_u32 s{sT3}, s{sT3}, {XHI}
v_add_u32 v{vXA}, s{sT3}, v{vXA}
v_xor_b32 v{vXA+1}, 32, v{vXA}
v_xor_b32 v{vXA+2}, 64, v{vXA}
v_xor_b32 v{vXA+3}, 0x60, v{vXA}
v_bfe_u32 v{vVS}, v{vLANE}, 4, 1
v_and_b32 v{vT1}, 3, v{vLANE}
v_lshlrev_b32 v{vWB+1}, 3, v{vT1}
v_lshl_add_u32 v{vWB+1}, v{vVS}, 5, v{vWB+1}
v_bfe_u32 v{vT0}, v{vLANE}, 3, 1
v_lshl_add_u32 v{vDUM}, v{vT0}, 6, v{vWB+1}    ; + (rr>>1)*64
v_bfe_u32 v{vT0}, v{vLANE}, 2, 2          ; rr
v_lshl_add_u32 v{vWB}, v{vONE}, 3, v{vT0}      ; 8hh+rr
v_lshl_add_u32 v{vWT}, v{vT0}, 7, v{vDUM}
s_lshl_b32 s{sT3}, s{sT1}, 6
v_xor_b32 v{vWT}, s{sT3}, v{vWT}
v_mul_u32_u24 v{vWT+1}, 3072, v{vONE}
v_add_u32 v{vWT}, v{vWT}, v{vWT+1}
v_add_u32 v{vWT}, {L_REG}, v{vWT}
v_add_u32 v{vWT+1}, 49152, v{vWT}
v_mul_u32_u24 v{vWB}, 384, v{vWB}
s_lshl_b32 s{sT3}, s{sT1}, 6
v_xor_b32 v{vWB+1}, s{sT3}, v{vDUM}
v_add_u32 v{vWB}, v{vWB}, v{vWB+1}
v_add_u32 v{vWB}, {L_REG}, v{vWB}
v_add_u32 v{vWB+1}, 0x10000, v{vWB}
v_lshl_add_u32 v124, v{vONE}, 2, v{vT0}
v_lshl_add_u32 v124, v124, 7, v{vDUM}
v_and_b32 v{vT1}, 15, v{vLANE}
v_lshlrev_b32 v{vVO}, 4, v{vT1}
v_lshl_add_u32 v{vVO}, v{vONE}, 8, v{vVO}
v_add_u32 v{vVO}, 1024, v{vVO}
v_lshl_add_u32 v{vVS}, v{vVS}, 18, v{vVO}
v_mov_b64 {vr(vS1a,2)}, 0
v_mov_b64 {vr(vS2a,2)}, 0
s_mov_b32 s{sT3}, 0xffff0000
""")
    x_loads(1)
    if cfg.vtpos == 1: vtouch()
    stamp("setup")

    ESLOT = [3, 0, 1, 2]
    def u_parts(n, role=0):
        j, h = divmod(n, 2)
        return [f"""
s_mul_i32 s{sT2}, s{sPJ+j}, {128*3072}
s_add_u32 m0, s{sWR}, {(n & 3) * 24576}
s_add_u32 s{sT2}, s{sT2}, s{sCST}
""" + (f"s_add_u32 s{sT2}, s{sT2}, {64*3072}\n" if h else "") + f"buffer_load_dwordx4 v{vWO}, {srd(W)}, s{sT2} offen lds",
f"buffer_load_dwordx4 v{vWO}, {srd(W)}, s{sT2} offen offset:1024 lds",
f"buffer_load_dwordx4 v{vWO}, {srd(W)}, s{sT2} offen offset:2048 lds"]
    def e_parts(n):
        j, h = divmod(n, 2)
        out = []
        for bl in range(2):
            for q in range(3):
                pre = ""
                if q == 0 and bl == 0:
                    pre = f"s_mul_i32 s{sT2}, s{sPJ+j}, {128*2752}\ns_add_u32 m0, s{sWRD}, {ESLOT[n&3]*32768}\ns_add_u32 s{sT2}, s{sT2}, s{sDST}\n"
                    if h: pre += f"s_add_u32 s{sT2}, s{sT2}, {64*2752}\n"
                if q == 0 and bl == 1:
                    pre = f"s_add_u32 m0, s{sWRD}, {ESLOT[n&3]*32768+3072}\ns_add_u32 s{sT2}, s{sT2}, {8*2752}\n"
                out.append(pre + f"buffer_load_dwordx4 v{vW4+q}, {srd(TS)}, s{sT2} offen offset:{q*1024} lds")
        return out

    def unpack(n):
        for q in range(4):
            x = XRAW + n * 4 + q
            e(f"v_lshlrev_b32 v{XUN + (n*4+q)*2}, 16, v{x}")
            e(f"v_and_b32 v{XUN + (n*4+q)*2 + 1}, s{sT3}, v{x}")
    for n in range(8):
        if n == cfg.u0pos:
            for p in u_parts(0, 0): e(p); op(("u", 0))
            if cfg.ut:
                e(f"""
v_lshlrev_b32 v28, 10, v{vLANE}
s_add_u32 s{sT2}, s{sT2}, {64*3072}
s_mov_b64 exec, 0xffffff
buffer_load_dword v29, v28, {srd(W)}, s{sT2} offen
s_mov_b64 exec, -1
""")
                op("t")
            if cfg.vtpos == 3: vtouch()
        wait_tag(("x", n))
        for q in range(4):
            x = XRAW + n * 4 + q
            e(f"v_dot2c_f32_bf16 v{vS1a + (q&1)}, s{sONES}, v{x}")
            e(f"v_dot2c_f32_bf16 v{vS2a + (q&1)}, v{x}, v{x}")
        if n < cfg.lnsplit: unpack(n)
    if cfg.vtpos == 2: vtouch()
    if cfg.pt == 2: ptouch()
    stamp("LN1", 2)
    e(f"""
s_nop 2
v_add_f32 v{vS1a}, v{vS1a}, v{vS1b}
v_add_f32 v{vS2a}, v{vS2a}, v{vS2b}
s_nop 1
v_add_f32_dpp v{vS1a}, v{vS1a}, v{vS1a} quad_perm:[1,0,3,2] row_mask:0xf bank_mask:0xf
v_add_f32_dpp v{vS2a}, v{vS2a}, v{vS2a} quad_perm:[1,0,3,2] row_mask:0xf bank_mask:0xf
s_nop 1
v_add_f32_dpp v{vS1a}, v{vS1a}, v{vS1a} quad_perm:[2,3,0,1] row_mask:0xf bank_mask:0xf
v_add_f32_dpp v{vS2a}, v{vS2a}, v{vS2a} quad_perm:[2,3,0,1] row_mask:0xf bank_mask:0xf
s_nop 1
v_add_f32_dpp v{vS1a}, v{vS1a}, v{vS1a} row_half_mirror row_mask:0xf bank_mask:0xf
v_add_f32_dpp v{vS2a}, v{vS2a}, v{vS2a} row_half_mirror row_mask:0xf bank_mask:0xf
v_mul_f32 v{vNM}, {hex(f2u(-1.0/512))}, v{vS1a}
v_mul_f32 v{vS2a}, {hex(f2u(1.0/512))}, v{vS2a}
v_fma_f32 v{vS2a}, -v{vNM}, v{vNM}, v{vS2a}
v_max_f32 v{vS2a}, 0, v{vS2a}
v_add_f32 v{vS2a}, {hex(f2u(1e-5))}, v{vS2a}
v_rsq_f32 v{vRS}, v{vS2a}
s_waitcnt lgkmcnt(0)
v_mul_f32 v{vNM}, v{vNM}, v{vRS}
s_mul_i32 s{sTAG}, s{sTAG}, 0x9E3779B1
s_add_u32 s{sTAG}, s{sTAG}, 0x7F4A7C15
""")
    for n in range(8):
        if n >= cfg.lnsplit: unpack(n)
        for q in range(4):
            u = XUN + (n*4+q)*2
            e(f"v_pk_fma_f32 {vr(u,2)}, {vr(u,2)}, {vr(vRS,2)}, {vr(vNM,2)} op_sel_hi:[1,0,0]")
        for q in range(4):
            u = XUN + (n*4+q)*2
            e(f"v_cvt_pk_bf16_f32 v{XRAW+n*4+q}, v{u}, v{u+1}")
        if n < 4:
            e(f"ds_write_b128 v{vXW+1}, {vr(XRAW+n*4,4)} offset:{n*8192}")
        else:
            e(f"ds_write_b128 v{vXW}, {vr(XRAW+n*4,4)} offset:{(n-4)*8192}")
    stamp("LN2", 2)
    for p in u_parts(1, 0): e(p); op(("u", 1))
    if cfg.a2pre:
        for p in u_parts(2, 0): e(p); op(("u", 2))
    ops0 = list(st["ops"])

    def tiles(role): return [(1, ACC), (0, ACC2)] if role == 0 else [(2, ACC)]
    def tr_list(it, role):
        out = []
        for s in range(4):
            for q, (strip, acc) in enumerate(tiles(role)):
                b = WF + (it & 1) * 32 + (s * 2 + q) * 4
                a = vWT + ((it & 3) >> 1)
                o = (it & 1) * 24576 + s * 6144 + strip * 1024
                out.append([f"ds_read_b64_tr_b16 {vr(b,2)}, v{a} offset:{o}", f"ds_read_b64_tr_b16 {vr(b+2,2)}, v{a} offset:{o+512}"])
        return out
    def x_list(n):
        return [f"ds_read_b128 {vr(XF + n*16 + s*4, 4)}, v{vXA+s} offset:{(n&3)*8192}" for s in range(4)]
    def mf_list(n, role):
        out = []
        for s in range(4):
            for q, (strip, acc) in enumerate(tiles(role)):
                c = "0" if (n == 0 and s == 0) else vr(acc, 16)
                w, x = vr(WF+(n&1)*32+(s*2+q)*4,4), vr(XF+n*16+s*4,4)
                out.append(f"{MF} {vr(acc,16)}, {x}, {w}, {c}" if role == 1 else f"{MF} {vr(acc,16)}, {w}, {x}, {c}")
        return out
    def cvt_acc(dst, src):
        for j in range(8):
            e(f"v_cvt_pk_bf16_f32 v{dst+j}, v{src+2*j}, v{src+2*j+1}")
    def h_store(dst, src):
        cvt_acc(dst, src)
        for j in range(8):
            e(f"v_pk_max_i16 v{dst+j}, v{dst+j}, 0")
        e(f"""
buffer_store_dwordx4 {vr(dst,4)}, v{vL16}, {srd(H)}, s{sHST} offen sc1
buffer_store_dwordx4 {vr(dst+4,4)}, v{vL16}, {srd(H)}, s{sHST} offen offset:2048 sc1
""")
        op("hst", 2)
    vV4 = 248
    KB = 48
    def kv_base():
        e(f"s_add_u32 s{KB}, s{KD}, s{sKVO}\ns_addc_u32 s{KB+1}, s{KD+1}, 0")
    def kv_loads(b, wrap=True, mask=False):
        o = b * 2048 - 4096
        e(f"""
global_load_dwordx4 {vr(KV+b*12,4)}, v{vL16}, s[{KB}:{KB+1}] offset:{o} sc1
{f"s_mov_b64 exec, s[{sN}:{sN+1}]" if mask else ""}
global_load_dwordx4 {vr(KV+b*12+4,4)}, v{vV4+b*2}, s[{KB}:{KB+1}] offset:{o} sc1
global_load_dwordx4 {vr(KV+b*12+8,4)}, v{vV4+b*2+1}, s[{KB}:{KB+1}] offset:{o+512} sc1
{"s_mov_b64 exec, -1" if mask else ""}
""")
        if b == 3:
            e(f"s_add_u32 s{sKVO}, s{sKVO}, s{sSTR}\ns_and_b32 s{sKVO}, s{sKVO}, 0x3ffff")
            kv_base()
    def kv_publish():
        l = e.lab()
        e(f"""
v_mov_b32 v{vT1}, {L_FB + 8}
v_mov_b32 v{vT0}, 1
s_mov_b64 exec, 1
ds_add_rtn_u32 v{vT0}, v{vT1}, v{vT0}
s_waitcnt lgkmcnt(0)
v_cmp_eq_u32 vcc, 7, v{vT0}
s_mov_b64 exec, -1
s_cbranch_vccz {l}
""")
        flag_store(WS_KVF, sKVF)
        e(f"{l}:")
    def iteration(mfs, trs, xs, dq):
        n = len(trs)
        for s in range(n):
            if mfs: e(mfs[s])
            for l in xs[s * 4 // n:(s + 1) * 4 // n]: e(l)
            for l in trs[s]: e(l)
            for _ in range((len(dq) + n - s - 1) // (n - s) if n == 4 or s & 1 == 0 or len(dq) > 4 else 0):
                tag, p = dq.pop(0); e(p); op(tag)
        while dq:
            tag, p = dq.pop(0); e(p); op(tag)
    def epiA(role):
        if role == 0:
            l = e.lab()
            e(f"""
s_and_b32 s{sT0}, s{sKVST}, 0x3fff
s_lshr_b32 s{sT0}, s{sT0}, 1
s_and_b32 s{sQS}, s{sKVST}, 0xffffc000
s_add_u32 s{sQS}, s{sQS}, s{sT0}
s_add_u32 s{sQS}, s{sQS}, 12288
s_mov_b32 s{sT2}, {hex(f2u(0.25*math.log2(math.e)))}
s_add_u32 s{sT0}, s{sKVST}, 0x40000
s_lshl_b32 s{sT1}, s{sWV}, 10
v_add_u32 v{vT0}, s{sT1}, v{vL16}
v_mov_b32 v{vT1}, 0
v_lshrrev_b32 v{vDUM}, 2, v{vL16}
s_nop 0
""")
            for j in range(16):
                e(f"v_mul_f32 v{ACC+j}, s{sT2}, v{ACC+j}")
            cvt_acc(WF, ACC)
            e(f"""
buffer_store_dwordx4 {vr(WF,4)}, v{vL16}, {srd(WS)}, s{sKVST} offen sc1
buffer_store_dwordx4 {vr(WF+4,4)}, v{vL16}, {srd(WS)}, s{sT0} offen sc1
s_add_u32 s{sT0}, s{sQS}, 0x40000
""")
            cvt_acc(WF + 8, ACC2)
            e(f"""
buffer_store_dwordx4 {vr(WF+8,4)}, v{vL16}, {srd(WS)}, s{sQS} offen sc1
buffer_store_dwordx4 {vr(WF+12,4)}, v{vL16}, {srd(WS)}, s{sT0} offen sc1
s_bitcmp1_b32 s{sWV}, 0
s_cbranch_scc1 {l}
ds_write_b128 v{vT0}, {vr(WF,4)} offset:{L_KX}
ds_write_b128 v{vT0}, {vr(WF+4,4)} offset:{L_KX+1024}
ds_write_b32 v{vDUM}, v{vT1} offset:{L_FB}
{l}:
""")
        else:
            e("s_nop 11")
            cvt_acc(PK, ACC)
            e(f"""
buffer_store_dwordx4 {vr(PK,4)}, v{vVS}, {srd(WS)}, s{sKVST} offen sc1
buffer_store_dwordx4 {vr(PK+4,4)}, v{vVS}, {srd(WS)}, s{sKVST} offen offset:512 sc1
""")
        op("kvst", 2)
        stamp("epiA")
    PL = 241
    def rounds(role):
        st["ops"] = list(ops0)
        for it in range(8):
            wait_tag(("u", it))
            stamp(f"w{it}", 2)
            e("s_waitcnt lgkmcnt(0)\ns_barrier")
            stamp(f"b{it}", 1 if it == 0 else 2)
            U = lambda n: [(("u", n), p) for p in u_parts(n)]
            dq = (U(2) + U(3)) if it == 0 else (U(it + 3) if it + 3 < 8 else [])
            if role == 1 and 0 <= it - cfg.e0it < cfg.npre: dq = [(("e", it - cfg.e0it), p) for p in e_parts(it - cfg.e0it)]
            iteration(mf_list(it - 1, role) if it else None, tr_list(it, role), x_list(it), dq)
            if role == 1 and (cfg.ft1 == it + 1 or cfg.ft2 == it + 1): ftouch(cfg.ft2 == it + 1, cfg.ft1 == it + 1)
            if it == 3:
                for s in range(4):
                    e(f"v_subrev_u32 v{vXA+s}, {XHI}, v{vXA+s}")
            if it == 7:
                e("s_waitcnt lgkmcnt(0)")
                for m in mf_list(7, role): e(m)
                epiA(role)
                e("s_waitcnt lgkmcnt(0)\ns_barrier")
                stamp("b8")
            if it == cfg.supF and role == 1:
                e(f"""
v_mov_b64 {vr(PK+8,2)}, 0
v_mov_b64 {vr(PK+10,2)}, 0
s_mov_b64 exec, 1
v_mov_b32 v{PK+8}, s{sONES}
v_mov_b32 v{PK+9}, s{sONES}
v_mov_b32 v{PK+10}, s{sONES}
v_mov_b32 v{PK+11}, s{sONES}
s_and_b32 s{sT0}, s{sKVST}, 0xffffc000
s_lshl_b32 s{sT1}, s{sR}, 18
s_add_u32 s{sT0}, s{sT0}, s{sT1}
s_add_u32 s{sT0}, s{sT0}, 8192
s_mov_b64 exec, 0xff
buffer_store_dwordx4 {vr(PK+8,4)}, v{vL16}, {srd(WS)}, s{sT0} offen sc1
s_mov_b64 exec, -1
""")
                op("ones")
                for q in range(3):
                    e(f"""
v_add_u32 v{vT0}, {q*64}, v{vLANE}
v_mul_u32_u24 v{vT1}, 2731, v{vT0}
v_lshrrev_b32 v{vT1}, 16, v{vT1}
v_mul_u32_u24 v{vW4+q}, 24, v{vT1}
v_sub_u32 v{vT0}, v{vT0}, v{vW4+q}
v_mul_u32_u24 v{vW4+q}, 2752, v{vT1}
v_lshlrev_b32 v{vT1}, 1, v{vT1}
v_and_b32 v{vT1}, 4, v{vT1}
v_xor_b32 v{vT0}, v{vT0}, v{vT1}
v_lshl_add_u32 v{vW4+q}, v{vT0}, 4, v{vW4+q}
""")
                    if q: e(f"v_subrev_u32 v{vW4+q}, {q*1024}, v{vW4+q}")
            if it == cfg.supF and role == 1:
                e(f"""
s_mul_i32 s{sT0}, s{sI}, {H_BLK}
s_add_u32 s{sT0}, s{sT0}, {WS_H}
s_add_u32 s{H}, s{pWS}, s{sT0}
s_addc_u32 s{H+1}, s{pWS+1}, 0
s_mov_b32 s{H+2}, {H_BLK}
s_mov_b32 s{H+3}, 0x00020000
""")
    e(f"s_cmp_lg_u32 s{sROLE}, 0\ns_cbranch_scc1 L_fwave")
    rounds(0)
    e("s_setprio 2")
    e(f"""
s_and_b32 s{sT1}, s{sI}, 1
s_lshl_b32 s{sT1}, s{sT1}, 1
s_lshr_b32 s{sT0}, s{sU}, 1
s_add_u32 s{sOFL}, s{sT1}, s{sT0}
s_lshl_b32 s{sT0}, s{sG}, 2
s_add_u32 s{sT0}, s{sT0}, s{sOFL}
s_lshl_b32 s{sT0}, s{sT0}, 18
s_add_u32 s{sT0}, s{sT0}, {WS_KV + 4096}
s_add_u32 s{KD}, s{pWS}, s{sT0}
s_addc_u32 s{KD+1}, s{pWS+1}, 0
s_and_b32 s{sT0}, s{sI}, 24
s_lshl_b32 s{sKVO}, s{sT0}, 13
s_lshl_b32 s{sT0}, s{sR}, 14
s_add_u32 s{sKVO}, s{sKVO}, s{sT0}
s_add_u32 s{KB}, s{KD}, s{sKVO}
s_addc_u32 s{KB+1}, s{KD+1}, 0
s_mov_b32 s{sSTR}, 32768
s_lshr_b32 s{sT0}, s{sI}, 1
s_lshl_b32 s{sT0}, s{sT0}, 14
s_add_u32 s{sT0}, s{sT0}, 8192
s_add_u32 s{QB}, s{KD}, s{sT0}
s_addc_u32 s{QB+1}, s{KD+1}, 0
v_and_b32 v{vONE}, 27, v{vLANE}
v_cmp_ne_u32 vcc, 16, v{vONE}
s_mov_b32 s{sVMASK}, 0xffff0000
s_mov_b32 s{sVMASK+1}, 0xffff0000
v_cndmask_b32 v{vONE}, 0, 16, vcc
s_lshl_b32 s{sT0}, s{sR}, 11
v_add_u32 v{vWC}, s{sT0}, v{vL16}
v_xor_b32 v{vWC+1}, 2048, v{vWC}
s_lshl_b32 s{sT0}, s{sOFL}, 10
v_add_u32 v{vVS}, s{sT0}, v{vL16}
""")
    for j in range(0, 64, 2):
        e(f"v_mov_b64 {vr(OO+j,2)}, 0")
    for q in range(8):
        o = (q >> 1) * 2048 - 4096 + (q & 1) * 512
        e(f"v_add_u32 v{vT0}, {4096 - o}, v{vONE}\nv_cndmask_b32 v{vV4+q}, v{vVO}, v{vT0}, s[{sVMASK}:{sVMASK+1}]")
    PL, PL2 = 12, 10
    sv = cfg.psleep; cfg.psleep = cfg.ksleep
    e(f"""
ds_read_b128 {vr(PP,4)}, v{vVS} offset:{L_KX}
v_mov_b64 {vr(KV+3*12+8,2)}, 0
v_mov_b64 {vr(KV+3*12+10,2)}, 0
v_and_b32 v{vDUM}, 7, v{vLANE}
v_lshlrev_b32 v{vDUM}, 7, v{vDUM}
s_and_b32 s{sHST}, s{sKVF}, 0xfffffc00
s_add_u32 s{sHST}, s{sHST}, {WS_KVF}
v_mov_b32 v{vWO+1}, {L_FB}
v_and_b32 v{vWO}, 31, v{vLANE}
v_lshlrev_b32 v{vWO}, 7, v{vWO}
""")
    e("s_waitcnt vmcnt(0)")
    kv_publish()
    stamp("kpub")
    l0, l1 = e.lab(), e.lab()
    e(f"s_cmp_lg_u32 s{sU}, 0\ns_cbranch_scc1 {l0}")
    lds_wait(8, 8, a=vWO+1)
    poll1(PL, vDUM, sHST, cfg.kdel)
    e(f"v_mov_b32 v{vT0}, 1\nds_write_b32 v{vWO+1}, v{vT0} offset:12\ns_branch {l1}\n{l0}:")
    lds_wait(12, 1, a=vWO+1)
    e(f"{l1}:")
    stamp("kvpoll")
    for t in range(4):
        e(f"global_load_dwordx4 {vr(QQ+t*4,4)}, v{vWC+(t>>1)}, s[{QB}:{QB+1}] offset:{(t&1)*1024} sc1")
    kv_loads(0); kv_loads(1); kv_loads(2)
    def maxtree(dst, S, init=None):
        if init is None:
            e(f"v_max3_f32 v{dst}, v{S}, v{S+1}, v{S+2}")
            e(f"v_max_f32 v{dst}, v{dst}, v{S+15}")
            rest = list(range(3, 15))
        else:
            rest = list(range(16))
        for j in range(0, len(rest), 2):
            e(f"v_max3_f32 v{dst}, v{dst}, v{S+rest[j]}, v{S+rest[j+1]}")
    def setc(ca, cb):
        e(f"""
v_mov_b32 v{ca}, v{vT0}
v_mov_b32 v{cb}, v{vT1}
s_nop 1
v_permlane32_swap_b32 v{ca}, v{vT0}
v_permlane32_swap_b32 v{cb}, v{vT1}
s_nop 1
v_max_f32 v{vT0}, v{vT0}, v{ca}
v_max_f32 v{vT1}, v{vT1}, v{cb}
v_sub_f32 v{ca}, 0, v{vT0}
v_sub_f32 v{ca+1}, 0, v{vT0}
v_sub_f32 v{cb}, 0, v{vT1}
v_sub_f32 v{cb+1}, 0, v{vT1}
""")
        for j in range(2, 16, 2):
            e(f"v_mov_b64 {vr(ca+j,2)}, {vr(ca,2)}")
        for j in range(2, 16, 2):
            e(f"v_mov_b64 {vr(cb+j,2)}, {vr(cb,2)}")
    e("s_waitcnt vmcnt(9)")
    for t in range(4):
        e(f"{MF} {vr(CC+t*16,16)}, {vr(PP,4)}, {vr(QQ+t*4,4)}, 0")
    e(f"v_mov_b64 {vr(PP+4,2)}, 0\nv_mov_b64 {vr(PP+6,2)}, 0\ns_nop 6")
    maxtree(vT0, CC); maxtree(vT1, CC + 16)
    setc(CC, CC + 16)
    e(f"s_waitcnt vmcnt(6)\n{MF} {vr(S0,16)}, {vr(KV,4)}, {vr(QQ,4)}, {vr(CC,16)}")
    maxtree(vT0, CC + 32); maxtree(vT1, CC + 48)
    setc(CC + 32, CC + 48)
    if cfg.vm: e(f"s_mov_b64 s[{sN}:{sN+1}], -1")
    stamp("att0")
    V1 = lambda bb: vr(KV + bb*12 + 8, 4)
    e(f"""
buffer_load_dword v{PL2}, v{vWO}, {srd(WS)}, s{sRD} offen sc1
s_mov_b32 s{sCNT}, 0
s_call_b64 s[{RET}:{RET+1}], L_att
v_cmp_ne_u32 vcc, s{sTAG}, v{PL2}
s_cbranch_vccz L_kvall
""")
    poll1(PL2, vWO, sRD)
    cfg.psleep = sv
    e("L_kvall:")
    if cfg.vm: e(f"s_mov_b32 s{sN}, 0xffff\ns_mov_b32 s{sN+1}, 0xffff")
    if cfg.stamps == 2:
        for q in range(6):
            stamp(f"m{q}", 2)
            e(f"s_mov_b32 s{sCNT}, 0\ns_call_b64 s[{RET}:{RET+1}], L_att")
        stamp("m6", 2)
    O0, O1, O2, O3 = OO, OO + 16, OO + 32, OO + 48
    e(f"""
s_mov_b32 s{sCNT}, {0 if cfg.stamps == 2 else 6}
s_call_b64 s[{RET}:{RET+1}], L_att
s_mul_i32 s{sT1}, s{sU}, 4608
{MF} {vr(O3,16)}, {V1(3)}, {vr(PP+4,4)}, {vr(O3,16)}
s_add_u32 s{sT1}, s{sT1}, {L_PARK}
v_add_u32 v{vT0}, s{sT1}, v{vL16}
v_lshl_add_u32 v{vT1}, v{vLANE}, 2, s{sT1}
s_lshl_b32 s{sT0}, s{sU}, 2
s_add_u32 s{sT0}, s{sT0}, {L_FB + 16}
v_mov_b32 v{vWC}, s{sT0}
v_mov_b32 v{vWC+1}, 1
ds_write_b32 v{vWC}, v{vWC+1} offset:16
ds_write_b128 v{vT0}, {vr(O2,4)}
ds_write_b128 v{vT0}, {vr(O2+4,4)} offset:1024
ds_write_b32 v{vT1}, v{O2+8} offset:2048
s_xor_b32 s{sT0}, s{sU}, 1
s_mul_i32 s{sT1}, s{sT0}, 4608
ds_write_b128 v{vT0}, {vr(O3,4)} offset:2304
ds_write_b128 v{vT0}, {vr(O3+4,4)} offset:{2304+1024}
ds_write_b32 v{vT1}, v{O3+8} offset:{2304+2048}
ds_write_b32 v{vWC}, v{vWC+1}
s_add_u32 s{sT1}, s{sT1}, {L_PARK}
v_add_u32 v{vWO}, s{sT1}, v{vL16}
v_lshl_add_u32 v{vT1}, v{vLANE}, 2, s{sT1}
v_xor_b32 v{vWC}, 4, v{vWC}
s_and_b32 s{sT0}, s{sI}, 30
s_add_u32 s{sT0}, s{sT0}, s{sR}
s_lshl_b32 s{sT1}, s{sG}, 2
s_add_u32 s{sT1}, s{sT1}, s{sOFL}
s_lshl_b32 s{sOK}, s{sT0}, 5
s_add_u32 s{sOK}, s{sOK}, s{sT1}
s_lshl_b32 s{sFLG}, s{sOK}, 7
s_lshl_b32 s{sOK}, s{sOK}, 11
s_add_u32 s{sOK}, s{sOK}, {WS_O}
s_mov_b32 s{sSPIN}, {cfg.spin * 8}
""")
    stamp("att1")
    lds_wait(0, 1, a=vWC)
    e(f"""
ds_read_b128 {vr(S0,4)}, v{vWO}
ds_read_b128 {vr(S0+4,4)}, v{vWO} offset:1024
ds_read_b32 v{S0+8}, v{vT1} offset:2048
ds_read_b128 {vr(S1,4)}, v{vWO} offset:2304
ds_read_b128 {vr(S1+4,4)}, v{vWO} offset:{2304+1024}
ds_read_b32 v{S1+8}, v{vT1} offset:{2304+2048}
s_waitcnt lgkmcnt(0)
""")
    stamp("mrg")
    for j in range(8):
        e(f"v_add_f32 v{O0+j}, v{O0+j}, v{S0+j}")
        e(f"v_add_f32 v{O1+j}, v{O1+j}, v{S1+j}")
    e(f"""
v_add_f32 v{O0+8}, v{O0+8}, v{S0+8}
v_add_f32 v{O1+8}, v{O1+8}, v{S1+8}
v_mov_b32 v{vT0}, {hex(f2u(2.0**90))}
v_cmp_nlt_f32 vcc, v{O0+8}, v{vT0}
v_cmp_nlt_f32 s[{sT2}:{sT2+1}], v{O1+8}, v{vT0}
s_or_b64 vcc, vcc, s[{sT2}:{sT2+1}]
""")
    e("s_branch L_slow" if cfg.force_slow else "s_cbranch_vccnz L_slow")
    e(f"""
L_norm:
v_rcp_f32 v{S0}, v{O0+8}
v_rcp_f32 v{S0+2}, v{O1+8}
s_nop 0
""")
    for j in range(8):
        e(f"v_mul_f32 v{O0+j}, v{O0+j}, v{S0}")
        e(f"v_mul_f32 v{O1+j}, v{O1+j}, v{S0+2}")
    for j in range(4):
        e(f"v_cvt_pk_bf16_f32 v{CC+j}, v{O0+2*j}, v{O0+2*j+1}")
    for j in range(4):
        e(f"v_cvt_pk_bf16_f32 v{CC+4+j}, v{O1+2*j}, v{O1+2*j+1}")
    e(f"""
buffer_store_dwordx4 {vr(CC,4)}, v{vL16}, {srd(WS)}, s{sOK} offen sc1
buffer_store_dwordx4 {vr(CC+4,4)}, v{vL16}, {srd(WS)}, s{sOK} offen offset:1024 sc1
v_lshrrev_b32 v{vT0}, 3, v0               ; row
v_and_b32 v{vT1}, 7, v0
v_lshlrev_b32 v10, 10, v{vT0}
v_lshl_add_u32 v10, v{vT1}, 4, v10
s_lshl_b32 s{sT0}, s{sI}, 16
s_lshl_b32 s{sT1}, s{sG}, 7
s_add_u32 s{sKVO}, s{sT0}, s{sT1}
s_add_u32 s{sKVST}, s{sKVO}, 32768
buffer_load_dwordx4 {vr(48,4)}, v10, {srd(X)}, s{sKVO} offen
buffer_load_dwordx4 {vr(52,4)}, v10, {srd(X)}, s{sKVST} offen
v_lshlrev_b32 v{vT1}, 1, v{vT1}
v_xor_b32 v{vT1}, v{vT1}, v{vT0}
v_and_b32 v{vT1}, 15, v{vT1}
v_lshlrev_b32 v120, 8, v{vT0}
v_lshl_add_u32 v120, v{vT1}, 4, v120
v_add_u32 v120, {L_REG}, v120
v_xor_b32 v121, 16, v120
v_add_u32 v122, 0x10000, v120
v_add_u32 v123, 0x10000, v121
v_mov_b32 v3, {L_FB}
s_mov_b32 s{OUT}, s{pOUT}
s_mov_b32 s{OUT+1}, s{pOUT+1}
s_mov_b32 s{OUT+2}, 0x200000
s_mov_b32 s{OUT+3}, 0x00020000
s_waitcnt vmcnt(2)
""")
    flag_store(WS_OF, sFLG)
    if cfg.owarm:
        e(f"""
buffer_load_dwordx4 {vr(64,4)}, v{vL16}, {srd(WS)}, s{sOK} offen sc1
buffer_load_dwordx4 {vr(68,4)}, v{vL16}, {srd(WS)}, s{sOK} offen offset:1024 sc1
""")
    e("s_setprio 0")
    stamp("pub")
    TM, GA, XU, XA, vOA = 128, 16, 32, 48, 10
    def read_parts(TM, base):
        for p in range(4):
            a0, a1 = (120, 121) if p < 2 else (122, 123)
            o = (p & 1) * 32768 + base
            e(f"ds_read_b128 {vr(TM+p*8,4)}, v{a0} offset:{o}")
            e(f"ds_read_b128 {vr(TM+p*8+4,4)}, v{a1} offset:{o}")
    def sum_parts(TM):
        for j in range(0, 8, 2):
            e(f"v_pk_add_f32 {vr(TM+j,2)}, {vr(TM+j,2)}, {vr(TM+8+j,2)}")
            e(f"v_pk_add_f32 {vr(TM+16+j,2)}, {vr(TM+16+j,2)}, {vr(TM+24+j,2)}")
        for j in range(0, 8, 2):
            e(f"v_pk_add_f32 {vr(TM+j,2)}, {vr(TM+j,2)}, {vr(TM+16+j,2)}")
    lds_wait(4, 4)
    read_parts(TM, 0)
    e("s_waitcnt lgkmcnt(4)")
    read_parts(TM + 32, 8192)
    e(f"s_waitcnt vmcnt({3 if cfg.owarm else 1})")
    for j in range(8):
        e(f"v_lshlrev_b32 v{XU+2*j}, 16, v{XA+j}")
        e(f"v_and_b32 v{XU+2*j+1}, 0xffff0000, v{XA+j}")
    e("s_waitcnt lgkmcnt(8)")
    sum_parts(TM)
    e("s_waitcnt lgkmcnt(0)")
    sum_parts(TM + 32)
    src = lambda j: TM + (j >> 3) * 32 + (j & 7)
    for j in range(16):
        e(f"v_mul_f32 v{GA+j}, {hex(f2u(-math.log2(math.e)))}, v{src(j)}")
    for j in range(16):
        e(f"v_exp_f32 v{GA+j}, v{GA+j}")
    e("s_nop 0")
    for j in range(16):
        e(f"v_add_f32 v{GA+j}, 1.0, v{GA+j}")
    for j in range(16):
        e(f"v_rcp_f32 v{GA+j}, v{GA+j}")
    e("s_nop 0")
    for j in range(0, 16, 2):
        e(f"v_pk_mul_f32 {vr(GA+j,2)}, {vr(GA+j,2)}, {vr(src(j),2)}")
    stamp("gate")
    e("s_barrier")
    stamp("B1")
    read_parts(TM, 16384)
    e("s_waitcnt lgkmcnt(4)")
    read_parts(TM + 32, 16384 + 8192)
    for h in range(2):
        e(f"s_waitcnt lgkmcnt({8 if h == 0 else 0})")
        sum_parts(TM + h*32)
        for j in range(0, 8, 2):
            e(f"v_pk_fma_f32 {vr(TM+h*32+j,2)}, {vr(TM+h*32+j,2)}, {vr(GA+h*8+j,2)}, {vr(XU+h*8+j,2)}")
        for j in range(4):
            e(f"v_cvt_pk_bf16_f32 v{XA+h*4+j}, v{TM+h*32+2*j}, v{TM+h*32+2*j+1}")
        e(f"buffer_store_dwordx4 {vr(XA+h*4,4)}, v{vOA}, {srd(OUT)}, s{sKVO if h == 0 else sKVST} offen {['', 'sc1', 'nt', 'sc0 sc1'][cfg.ost]}")
    e(f"""
s_or_b32 s{sT1}, s2, s{sU}
s_cmp_lg_u32 s{sT1}, 0
s_cbranch_scc1 L_fin
""")
    flag_store(WS_EPOCH, sT1)
    e("s_branch L_fin")

    e("L_fwave:")
    rounds(1)
    vFB, vW2O, vW2T, vL4, vPB = 3, 4, 6, 8, 9
    e(f"""
v_mov_b32 v{vFB}, {L_FB}
v_sub_u32 v{vDUM}, 1, v{vLANE}
v_max_i32 v{vDUM}, 0, v{vDUM}
s_lshl_b32 s{sREG}, s{sU}, 15
s_add_u32 s{sREG}, s{sREG}, {L_REG}
v_mov_b32 v{vW2O}, v{vWP}
v_add_u32 v{vW2O+1}, {8192-1024}, v{vWP}
v_add_u32 v{vW2T}, s{sREG}, v124
v_xor_b32 v{vW2T+1}, 64, v{vW2T}
v_and_b32 v{vL4}, 31, v{vLANE}
v_lshlrev_b32 v{vL4}, 7, v{vL4}
""")
    wait_tag("kvst")
    kv_publish()
    stamp("kpub")
    if cfg.ft == 1 and cfg.ehold != 2: ftouch(True, False)
    if cfg.stouch:
        nw2, nwo, sh = (11, 4, 31) if cfg.stouch == 1 else (43, 16, 7)
        e(f"""
s_and_b32 s{sT0}, s{sI}, {sh}
s_lshl_b32 s{sT0}, s{sT0}, 2
s_add_u32 s{sT0}, s{sT0}, s{sU}
s_lshl_b32 s{sT2}, s{sG}, 7
s_mul_i32 s{sT1}, s{sT0}, {nw2*1024}
s_min_u32 s{sT1}, s{sT1}, {(1376-nw2)*1024}
s_add_u32 s{sT1}, s{sT1}, s{sT2}
s_add_u32 s88, s{pW2}, s{sT1}
s_addc_u32 s89, s{pW2+1}, 0
s_mul_i32 s{sT1}, s{sT0}, {nwo*1024}
s_add_u32 s{sT1}, s{sT1}, s{sT2}
s_add_u32 s100, s{pWO}, s{sT1}
s_addc_u32 s101, s{pWO+1}, 0
""")
        for k in range(nwo): e(f"s_load_dword s{pBX}, s[100:101], {k*1024}")
        for k in range(nw2): e(f"s_load_dword s{pBX}, s[88:89], {k*1024}")
    nfb = [0]
    def fbar():
        nfb[0] += 1
        if cfg.fbp: e("s_setprio 3")
        e(f"s_mov_b64 exec, 1\nds_add_u32 v{vFB}, v{vDUM}\ns_mov_b64 exec, -1")
        lds_wait(0, 4 * nfb[0])
        if cfg.fbp: e(f"s_setprio {cfg.pm}")
    e(f"s_setprio {cfg.pm}")
    ACCS = [16, 96, 80]
    WO = OUT
    e(f"""
s_mov_b32 s{W}, s{pW2}
s_mov_b32 s{W+1}, s{pW2+1}
s_mov_b32 s{W+2}, 0x158000
s_mov_b32 s{WO}, s{pWO}
s_mov_b32 s{WO+1}, s{pWO+1}
s_mov_b32 s{WO+2}, 0x80000
s_mov_b32 s{WO+3}, 0x00020000
s_lshl_b32 s{sT0}, s{sG}, 7
s_mul_i32 s{sSTART}, s{sU}, {352*1024}
s_add_u32 s{sSTART}, s{sSTART}, s{sT0}
s_lshl_b32 s{sCST}, s{sU}, 14
s_add_u32 s{sCST}, s{sCST}, s{sT0}
s_lshl_b32 s{sWR}, s{sU}, 11
s_mul_i32 s{sINC}, s{sU}, {22*2048}
""")
    def fill_parts(rho):
        out = []
        for sd, stride, lo in ((WO, 131072, 16384), (W, 352*1024, 0)):
            for h in range(2):
                out.append(f"""s_add_u32 m0, s{sWR}, {L_REG + rho*32768 + lo + h*8192}
s_add_u32 s{sT2}, s{sCST}, {rho*stride + h*65536}
buffer_load_dwordx4 v{vW2O}, {srd(sd)}, s{sT2} offen lds""")
                out.append(f"buffer_load_dwordx4 v{vW2O+1}, {srd(sd)}, s{sT2} offen offset:1024 lds")
        return out
    if cfg.e23 and not cfg.ehold:
        for m in (2, 3):
            for p in e_parts(m): e(p); op(("e", m))
    for n in range(8):
        wait_tag(("e", n))
        stamp(f"ew{n}", 3)
        fbar()
        stamp(f"ef{n}", 3)
        def rd(s):
            for t in range(3):
                b = WF + (s * 3 + t) * 4
                a = vWB + (ESLOT[n&3] >> 1)
                o = (ESLOT[n&3] & 1) * 32768 + s * 6144 + t * 128
                e(f"ds_read_b64_tr_b16 {vr(b,2)}, v{a} offset:{o}")
                e(f"ds_read_b64_tr_b16 {vr(b+2,2)}, v{a} offset:{o+1536}")
        if (cfg.ehold == 1 and n < 2) or (cfg.ehold == 2 and n < cfg.npre): dq = []
        elif n == 0: dq = [] if cfg.e23 else [(("e", m), p) for m in (2, 3) for p in e_parts(m)]
        elif n <= 4: dq = [(("e", n + 3), p) for p in e_parts(n + 3)]
        else: dq = [("f", p) for p in fill_parts(ESLOT[(n - 1) & 3])]
        nq = len(dq)
        rd(0); rd(1)
        for s in range(4):
            if s + 2 < 4:
                e("s_waitcnt lgkmcnt(6)")
                rd(s + 2)
            e(f"s_waitcnt lgkmcnt({6 * min(2, 3 - s)})")
            for t in range(3):
                c = "0" if (n == 0 and s == 0) else vr(ACCS[t], 16)
                e(f"{MF} {vr(ACCS[t],16)}, {vr(WF+(s*3+t)*4,4)}, {vr(XF+n*16+s*4,4)}, {c}")
                idx = s * 3 + t
                while dq and (nq - len(dq)) * 12 <= idx * nq:
                    tag, p = dq.pop(0); e(p); op(tag)
        assert not dq
        if cfg.ehold == 2 and n == cfg.npre - 1:
            lds_wait(cfg.hw, 1 if cfg.hw == 12 else 8)
            if cfg.edel: e(f"s_sleep {cfg.edel}")
            for m in range(cfg.npre, cfg.npre + 3):
                for p in e_parts(m): e(p); op(("e", m))
            if cfg.ft == 1: ftouch(True, False)
        if cfg.ehold == 1 and n == 1:
            lds_wait(12, 1)
            e(f"s_sleep {cfg.edel}")
            if cfg.ft == 9: ftouch(True, False)
            for m in (2, 3, 4):
                for p in e_parts(m): e(p); op(("e", m))
        stamp(f"em{n}", 3)
    e(f"s_setprio {cfg.pv}\ns_nop 10")
    for t in range(3):
        h_store(WF + 8*t, ACCS[t])
        e(f"s_add_u32 s{sHST}, s{sHST}, 8192")
    e(f"s_setprio {cfg.pm}")
    stamp("ffn1")
    fbar()
    G, W2F, HF, NWIN, WOF = 16, 80, 104, 11, 192
    def dma2(sd, sbase, k, slot, tag):
        e(f"""
s_add_u32 m0, s{sREG}, {slot * 2048}
s_add_u32 s{sT0}, s{sbase}, {k*16*1024}
buffer_load_dwordx4 v{vW2O}, {srd(sd)}, s{sT0} offen lds
buffer_load_dwordx4 v{vW2O+1}, {srd(sd)}, s{sT0} offen offset:1024 lds
""")
        op(tag, 2)
    def h_issue(k):
        hb = HF + (k % NWIN) * 8
        e(f"""
s_add_u32 s{sT0}, s{sINC}, {k*2048}
buffer_load_dwordx4 {vr(hb,4)}, v{vL16}, {srd(H)}, s{sT0} offen sc1
buffer_load_dwordx4 {vr(hb+4,4)}, v{vL16}, {srd(H)}, s{sT0} offen offset:1024 sc1
""")
        op(("h", k), 2)
    def f2_reads(k):
        slot = (k % 16) * 2048
        b = W2F + (k % 3) * 8
        for ch in range(2):
            e(f"ds_read_b64_tr_b16 {vr(b+ch*4,2)}, v{vW2T+ch} offset:{slot}")
            e(f"ds_read_b64_tr_b16 {vr(b+ch*4+2,2)}, v{vW2T+ch} offset:{slot+1024}")
    wait_tag("hst")
    flag_store(WS_HF, sFLG)
    stamp("hpub", 3)
    for q, p in enumerate(fill_parts(ESLOT[3])):
        e(p)
        if q & 1: e(f"s_waitcnt vmcnt({cfg.pace})")
    e("s_waitcnt vmcnt(0)")
    fbar()
    stamp("w8", 3)
    for s_ in range(8):
        for ch in range(2):
            b = WOF + (s_ * 2 + ch) * 4
            e(f"ds_read_b64_tr_b16 {vr(b,2)}, v{vW2T+ch} offset:{16384 + s_*2048}")
            e(f"ds_read_b64_tr_b16 {vr(b+2,2)}, v{vW2T+ch} offset:{16384 + s_*2048 + 1024}")
        e("s_waitcnt lgkmcnt(8)")
    e("s_waitcnt lgkmcnt(0)")
    stamp("wr", 3)
    for k in range(8, 16):
        dma2(W, sSTART, k, k, "w")
        e(f"s_waitcnt vmcnt({cfg.pace})")
    e(f"s_lshl_b32 s{sRD}, s{sI}, 12\ns_add_u32 s{sRD}, s{sRD}, {WS_HF}")
    stamp("w16", 3)
    poll1(W2F, vL4, sRD)
    stamp("hpoll")
    e(f"s_setprio {cfg.pm2}")
    st["ops"] = []
    NK = 22
    nh = 0
    def h_upto(n):
        nonlocal nh
        while nh < min(n, NK):
            h_issue(nh); nh += 1
    h_upto(cfg.hlead)
    f2_reads(0); f2_reads(1)
    for k in range(NK):
        if k == cfg.early:
            for n in range(nh + 1, k + NWIN + 1):
                h_upto(n); e(f"s_waitcnt vmcnt({cfg.pace})")
            e(f"""
s_lshl_b32 s{sOK}, s{sI}, 16
s_lshl_b32 s{sT1}, s{sU}, 14
s_add_u32 s{sOK}, s{sOK}, s{sT1}
s_add_u32 s{sOK}, s{sOK}, {WS_O}
s_and_b32 s{sT2}, s{sG}, {1 if cfg.orot else 0}
s_lshl_b32 s{sT1}, s{sT2}, 10
s_add_u32 s{sOK}, s{sOK}, s{sT1}
s_lshl_b32 s{sDST}, s{sT2}, 13
s_lshl_b32 s{sRD}, s{sI}, 12
s_lshl_b32 s{sT1}, s{sU}, 10
s_add_u32 s{sRD}, s{sRD}, s{sT1}
s_add_u32 s{sRD}, s{sRD}, {WS_OF}
v_and_b32 v{vL4}, 0x380, v{vL4}
v_and_b32 v{vT0}, 31, v{vLANE}
v_lshrrev_b32 v{vT1}, 5, v{vLANE}
v_xor_b32 v{vT1}, v{vT1}, v{vLANE}
v_and_b32 v{vT1}, 15, v{vT1}
v_lshlrev_b32 v{vPB}, 8, v{vT0}
v_lshl_add_u32 v{vPB}, v{vT1}, 4, v{vPB}
v_add_u32 v{vPB}, s{sREG}, v{vPB}
s_lshl_b32 s{sT0}, s{sU}, 2
v_add_u32 v10, s{sT0}, v{vFB}
""")
            stamp("fe")
            lds_wait(32, 1, a=10, sl=4)
            e("s_setprio 1")
        h_upto(k + cfg.hlead + 1 if k < cfg.early else k + NWIN)
        if 1 <= k <= 6:
            dma2(W, sSTART, k + 15, k - 1, ("w", k + 15))
        if k + 2 < NK:
            wait_tag(("w", k + 2))
            f2_reads(k + 2)
        wait_tag(("h", k))
        e(f"s_waitcnt lgkmcnt({4 * min(2, NK - 1 - k)})")
        b = W2F + (k % 3) * 8
        hb = HF + (k % NWIN) * 8
        for r in range(2):
            for ch in range(2):
                g = G + (r * 2 + ch) * 16
                c = "0" if k == 0 else vr(g, 16)
                e(f"{MF} {vr(g,16)}, {vr(b+ch*4,4)}, {vr(hb+r*4,4)}, {c}")
    stamp("f22")
    AD = 80
    e("s_setprio 3")
    e(f"buffer_load_dword v{vONE}, v{vL4}, {srd(WS)}, s{sRD} offen sc1" if cfg.opre else f"v_mov_b32 v{vONE}, 0")
    for q in range(8):
        e(f"v_xor_b32 v{AD+q}, {q << 5}, v{vPB}")
    e("s_nop 1")
    for q in range(8):
        for r in range(2):
            e(f"ds_write_b128 v{AD+q}, {vr(G+r*32+q*4,4)} offset:{r*8192}")
    for q in range(8):
        e(f"v_add_u32 v{AD+q}, s{sDST}, v{AD+q}")
    l = e.lab()
    e(f"""
s_waitcnt lgkmcnt(0)
s_mov_b64 exec, 1
ds_add_u32 v{vFB}, v{vDUM} offset:4
s_mov_b64 exec, -1
s_waitcnt vmcnt(0)
{f"v_cmp_ne_u32 vcc, s{sTAG}, v{vONE}" if cfg.opre else ""}
{f"s_cbranch_vccz {l}" if cfg.opre else ""}
""")
    poll1(vONE, vL4, sRD, cfg.osl)
    e(f"{l}:")
    stamp("opoll")
    OF, SA = 128, 16
    for h in range(2):
        e(f"s_mov_b32 s{sT0}, s{sOK}" if h == 0 else f"s_xor_b32 s{sT0}, s{sOK}, 1024")
        for s_ in range(8):
            if s_ and s_ % 2 == 0:
                e(f"s_add_u32 s{sT0}, s{sT0}, 4096")
            e(f"buffer_load_dwordx4 {vr(OF+(h*8+s_)*4,4)}, v{vL16}, {srd(WS)}, s{sT0} offen offset:{(s_&1)*2048} sc1")
    for h in range(2):
        for s_ in range(8):
            e(f"s_waitcnt vmcnt({15 - h*8 - s_})")
            for ch in range(2):
                a = SA + h*32 + ch*16
                c = "0" if s_ == 0 else vr(a, 16)
                e(f"{MF} {vr(a,16)}, {vr(WOF+(s_*2+ch)*4,4)}, {vr(OF+(h*8+s_)*4,4)}, {c}")
            if h == 1 and s_ >= 4:
                for q in (2*(s_-4), 2*(s_-4)+1):
                    e(f"ds_write_b128 v{AD+q}, {vr(SA+q*4,4)} offset:16384")
    for q in range(8):
        e(f"v_xor_b32 v{AD+q}, 0x2000, v{AD+q}")
    e("s_nop 1")
    for q in range(8):
        e(f"ds_write_b128 v{AD+q}, {vr(SA+32+q*4,4)} offset:16384")
    e("s_waitcnt lgkmcnt(0)")
    stamp("omf")
    e("s_barrier")
    e("L_fin:")
    if cfg.stamps:
        e("s_waitcnt vmcnt(0)")
        stamp("end")
        e(f"""
s_memrealtime s[88:89]
s_waitcnt lgkmcnt(0)
v_writelane_b32 v15, s86, 62
v_writelane_b32 v15, s88, 63
s_lshl_b32 s{sT0}, s2, 3
s_add_u32 s{sT0}, s{sT0}, s{sWV}
s_lshl_b32 s{sT0}, s{sT0}, 8
s_add_u32 s{sT0}, s{sT0}, 0x8000000
v_lshlrev_b32 v{vT0}, 2, v{vLANE}
buffer_store_dword v15, v{vT0}, {srd(WS)}, s{sT0} offen
""")
    e("L_exit:\ns_endpgm")

    e(".p2align 6\nL_att:")
    def ex(S, a, b):
        for j in range(a, b):
            e(f"v_exp_f32 v{S+j}, v{S+j}" if not (cfg.xp & 8 and j & 1) else "s_nop 1")
    def cv(S, a, b):
        for j in range(a, b):
            e(f"v_cvt_pk_bf16_f32 v{PP+j}, v{S+2*j}, v{S+2*j+1}")
    K = lambda bb: vr(KV + bb*12, 4)
    V0 = lambda bb: vr(KV + bb*12 + 4, 4)
    for s in range(4):
        b = s; pb = (s - 1) % 4; nb = (s + 1) % 4
        for t in range(4):
            S, Sn = (S0, S1) if t % 2 == 0 else (S1, S0)
            op_, vprev = (OO + 48, V1(pb)) if t == 0 else (OO + (t-1)*16, V1(b))
            tn = (t + 1) % 4
            ex(S, 0, 4)
            e(f"{MF} {vr(op_,16)}, {vprev}, {vr(PP+4,4)}, {vr(op_,16)}")
            if t == 0: kv_loads(pb, mask=cfg.vm)
            if t == 1 and s == 3: e(f"s_sub_u32 s{sCNT}, s{sCNT}, 1")
            ex(S, 4, 8)
            cv(S, 0, 4)
            if t == 3: e("s_waitcnt vmcnt(6)")
            e(f"{MF} {vr(Sn,16)}, {K(nb) if t == 3 else K(b)}, {vr(QQ+tn*4,4)}, {vr(CC+tn*16,16)}")
            ex(S, 8, 12)
            e(f"{MF} {vr(OO+t*16,16)}, {V0(b)}, {vr(PP,4)}, {vr(OO+t*16,16)}")
            ex(S, 12, 16)
            cv(S, 4, 8)
    e(f"s_cbranch_scc0 L_att\ns_setpc_b64 s[{RET}:{RET+1}]")

    e(f"""
L_slow:
s_waitcnt vmcnt(0)
s_mov_b32 s{sKVO}, 0
s_mov_b32 s{sCNT}, 64
v_mov_b32 v{vT0}, 0xff800000
v_mov_b32 v{vT1}, 0xff800000
L_slow_loop:
s_add_u32 s{KB}, s{KD}, s{sKVO}
s_addc_u32 s{KB+1}, s{KD+1}, 0
global_load_dwordx4 {vr(KV,4)}, v{vL16}, s[{KB}:{KB+1}] offset:-4096 sc1
s_add_u32 s{sKVO}, s{sKVO}, 2048
s_and_b32 s{sT0}, s{sKVO}, 8192
s_add_u32 s{sKVO}, s{sKVO}, s{sT0}
s_waitcnt vmcnt(0)
{MF} {vr(S0,16)}, {vr(KV,4)}, {vr(QQ,4)}, 0
{MF} {vr(S1,16)}, {vr(KV,4)}, {vr(QQ+4,4)}, 0
s_nop 15
s_nop 3
""")
    maxtree(vT0, S0, init=True)
    maxtree(vT1, S1, init=True)
    e(f"""
s_sub_u32 s{sCNT}, s{sCNT}, 1
s_cmp_lg_u32 s{sCNT}, 0
s_cbranch_scc1 L_slow_loop
s_mov_b32 s{sKVO}, 0
s_mov_b64 s[{KB}:{KB+1}], s[{KD}:{KD+1}]
s_mov_b32 s{sSTR}, 16384
{f"s_mov_b64 s[{sN}:{sN+1}], -1" if cfg.vm else ""}
s_mov_b32 s{sCNT}, 15
""")
    for j in range(4):
        e(f"v_mov_b32 v{KV+3*12+8+j}, 0\nv_mov_b32 v{PP+4+j}, 0")
    for b in range(3):
        kv_loads(b)
    for j in range(0, 32, 2):
        e(f"v_mov_b64 {vr(OO+j,2)}, 0")
    setc(CC, CC + 16)
    e(f"""
s_waitcnt vmcnt(6)
{MF} {vr(S0,16)}, {vr(KV,4)}, {vr(QQ,4)}, {vr(CC,16)}
s_nop 11
s_call_b64 s[{RET}:{RET+1}], L_att
s_nop 15
s_branch L_norm
L_codeend:
""")

    hdr = f"""; Fused kernel: LayerNorm -> QKV / FFN GEMMs -> attention -> out projection + gate (one launch, 256 workgroups).
; Kernarg: A_x, A_wqkv, A_wo, B_x (unused), B_w1, B_w2, out, debug, ws (8 bytes each).
{"; stamps=" + ("RT," if cfg.rt else "") + ",".join(names) if names else ";"}
; @launch grid=(256,1,1) block=(512,1,1) lds=163840
.amdgcn_target "amdgcn-amd-amdhsa--gfx950"
.text
.globl {cfg.kname}
.p2align 8
.type {cfg.kname},@function
{cfg.kname}:
"""
    ftr = f""".section .rodata,"a"
.p2align 6
.amdhsa_kernel {cfg.kname}
  .amdhsa_next_free_vgpr 256
  .amdhsa_next_free_sgpr 102
  .amdhsa_accum_offset 256
  .amdhsa_group_segment_fixed_size 0
  .amdhsa_kernarg_size 72
  .amdhsa_user_sgpr_count 2
  .amdhsa_user_sgpr_kernarg_segment_ptr 1
  .amdhsa_system_sgpr_workgroup_id_x 1
.end_amdhsa_kernel
"""
    return hdr + e.text() + ftr

if __name__ == "__main__":
    cfg = Cfg()
    out = f"cdna_kernels/{NAME}.s"
    for a in sys.argv[1:]:
        k, v = a.split("=")
        if k == "out":
            out = v
        else:
            assert hasattr(cfg, k), k
            setattr(cfg, k, int(v))
    open(out, "w").write(gen(cfg))
    print("wrote", out)
```
